```python
import torch

def _softmax(x, axis=-1):
    return torch.softmax(x, dim=axis)
def _gelu(x):
    return torch.nn.functional.gelu(x, approximate="tanh")
def _silu(x):
    return torch.nn.functional.silu(x)
def _sigmoid(x):
    return torch.sigmoid(x)
def _layernorm(x, axis=-1, eps=1e-5):
    m = x.mean(dim=axis, keepdim=True)
    v = x.var(dim=axis, keepdim=True, unbiased=False)
    return (x - m) / torch.sqrt(v + eps)
def _scatter_add(tgt, idx, src, axis=0):
    return tgt.clone().index_add_(axis, idx, src)
def _segment_sum(src, seg, n):
    out = torch.zeros((n,) + src.shape[1:], dtype=src.dtype)
    return out.index_add_(0, seg, src)
def _pad(x, pw):
    flat = tuple(v for pair in reversed(pw) for v in pair)
    return torch.nn.functional.pad(x, flat)

kernel_name = 'standalone__spectral_fnet__prompt'

def setup_inputs():

    _w = (lambda a: (lambda t: t.to(torch.bfloat16) if t.is_floating_point() else t)(torch.as_tensor(a)))
    B, S, D = 1, 2048, 512
    ns = torch.arange(S)[:, None] * torch.arange(S)[None, :]
    nd = torch.arange(D)[:, None] * torch.arange(D)[None, :]
    Ws_re = torch.cos(-2.0 * torch.pi * ns / S).to(float)
    Ws_im = torch.sin(-2.0 * torch.pi * ns / S).to(float)
    Wd_re = torch.cos(-2.0 * torch.pi * nd / D).to(float)
    Wd_im = torch.sin(-2.0 * torch.pi * nd / D).to(float)
    return {
        "x": _w((lambda *s: torch.randn(*s, dtype=torch.bfloat16) * 0.05)(B, S, D)),
        "dft_seq_re": _w(Ws_re),
        "dft_seq_im": _w(Ws_im),
        "dft_hid_re": _w(Wd_re),
        "dft_hid_im": _w(Wd_im),
    }

def reference(x, dft_seq_re, dft_seq_im, dft_hid_re, dft_hid_im):
    a = torch.einsum("bsd,ed->bse", x, dft_hid_re)
    b = torch.einsum("bsd,ed->bse", x, dft_hid_im)
    y = torch.einsum("ts,bse->bte", dft_seq_re, a) - torch.einsum("ts,bse->bte", dft_seq_im, b)
    return y
```

```python
import sys
HDR = open('standalone__spectral_fnet__prompt.s.ref').read().split('; Override launch')[0]
L = []
def e(s): L.append('    ' + s)
def lab(s): L.append(s + ':')

def f32(x):
    import struct
    return '0x%08x' % struct.unpack('<I', struct.pack('<f', x))[0]

def kernel_begin(name):
    L.append('.globl %s\n.p2align 8\n.type %s,@function\n%s:' % (name, name, name))

def desc(name, vgpr, sgpr=48):
    acc = (vgpr + 3)//4*4
    return f'''.p2align 6
.amdhsa_kernel {name}
  .amdhsa_next_free_vgpr {vgpr}
  .amdhsa_next_free_sgpr {sgpr}
  .amdhsa_accum_offset {acc}
  .amdhsa_group_segment_fixed_size 0
  .amdhsa_kernarg_size 64
  .amdhsa_user_sgpr_count 2
  .amdhsa_user_sgpr_kernarg_segment_ptr 1
  .amdhsa_system_sgpr_workgroup_id_x 1
.end_amdhsa_kernel
'''

def srd(d, b, nbytes):
    e(f's_mov_b32 s{d}, s{b}')
    e(f's_and_b32 s{d+1}, s{b+1}, 0xffff')
    e(f's_mov_b32 s{d+2}, {nbytes}')
    e(f's_mov_b32 s{d+3}, 0x20000')

def p1(name):
    kernel_begin(name)
    e('s_cmp_ge_u32 s2, 256')
    e(f's_cbranch_scc1 {name}_end')
    e('s_load_dwordx2 s[4:5], s[0:1], 0')
    e('s_load_dwordx2 s[6:7], s[0:1], 56')
    e('v_lshrrev_b32 v1, 6, v0')
    e('v_and_b32 v2, 63, v0')
    e('v_readfirstlane_b32 s16, v1')
    e('s_and_b32 s17, s2, 7')
    e('s_lshl_b32 s17, s17, 1')
    e('s_bfe_u32 s18, s2, 0x10003')
    e('s_or_b32 s17, s17, s18')
    e('s_lshr_b32 s18, s2, 4')
    e('v_lshrrev_b32 v3, 2, v0')
    e('v_lshrrev_b32 v4, 3, v0')
    e('v_and_b32 v4, 2, v4')
    e('v_xor_b32 v4, v4, v0')
    e('v_and_b32 v4, 3, v4')
    e('v_lshlrev_b32 v3, 14, v3')
    e('v_lshl_add_u32 v3, v4, 4, v3')
    e('s_lshl_b32 s19, s18, 10')
    e('s_lshl_b32 s20, s17, 6')
    e('s_add_u32 s19, s19, s20')
    e('s_add_u32 s20, s19, 0x100000')
    e('s_lshl_b32 s21, s16, 10')
    e('s_mov_b32 m0, s21')
    e('s_add_u32 s21, s21, 4096')
    e('s_waitcnt lgkmcnt(0)')
    srd(8, 4, 0x200000)
    e('buffer_load_dwordx4 v3, s[8:11], s19 offen lds')
    e('s_mov_b32 m0, s21')
    srd(12, 6, 0x200000)
    e('buffer_load_dwordx4 v3, s[8:11], s20 offen lds')
    e('v_and_b32 v4, 15, v2')
    e('v_lshrrev_b32 v5, 4, v2')
    e('v_lshl_add_u32 v6, v4, 2, s16')
    e('v_cvt_f32_u32 v7, v6')
    e(f'v_mul_f32 v7, {f32(1/128)}, v7')
    e('v_cmp_eq_u32 vcc, 0, v6')
    e('v_lshlrev_b32 v8, 2, v5')
    e('v_cvt_f32_u32 v8, v8')
    e('v_cndmask_b32 v9, v7, 0.5, vcc')
    e(f'v_mov_b32 v11, {f32(0.25)}')
    e('v_cndmask_b32 v10, 0, v11, vcc')
    for j in range(8):
        so = 16*(j >> 2) + (j & 3)
        if so == 0: src = 'v8'
        else:
            e(f'v_add_f32 v11, {f32(so)}, v8'); src = 'v11'
        e(f'v_mul_f32 v12, v7, {src}')
        e(f'v_fma_f32 v13, v9, {src}, v10')
        e(f'v_cos_f32 v{48+(j&1)}, v12')
        e(f'v_sin_f32 v{50+(j&1)}, v13')
        if j & 1:
            e('s_nop 0')
            e(f'v_cvt_pk_bf16_f32 v{16+j//2}, v48, v49')
            e(f'v_cvt_pk_bf16_f32 v{20+j//2}, v50, v51')
    e('s_mov_b32 s22, 0x80008000')
    e('s_bitcmp1_b32 s16, 0')
    e('s_cselect_b32 s23, s22, 0')
    e('s_cselect_b64 vcc, -1, 0')
    e('s_bitcmp1_b32 s16, 1')
    e('s_cselect_b32 s24, s22, 0')
    e('s_xor_b32 s25, s23, s24')
    for i in range(4):
        e(f'v_cndmask_b32 v{24+i}, v{16+i}, v{20+i}, vcc')
        e(f'v_cndmask_b32 v{28+i}, v{20+i}, v{16+i}, vcc')
    for i in range(4):
        e(f'v_xor_b32 v{24+i}, s25, v{24+i}')
        e(f'v_xor_b32 v{28+i}, s24, v{28+i}')
    for i in range(16):
        e(f'v_xor_b32 v{32+i}, s23, v{16+i}')
    e('v_lshrrev_b32 v8, 2, v2')
    e('v_lshlrev_b32 v8, 6, v8')
    e('v_and_b32 v9, 3, v2')
    e('v_lshl_add_u32 v8, v9, 3, v8')
    e('v_and_b32 v9, 1, v5')
    e('v_lshl_add_u32 v8, v9, 5, v8')
    e('v_xor_b32 v9, 32, v8')
    e('v_lshlrev_b32 v10, 15, v6')
    e('v_lshl_add_u32 v10, v5, 4, v10')
    e('s_bfe_u32 s26, s17, 0x20001')
    e('s_lshl_b32 s26, s26, 13')
    e('s_lshr_b32 s27, s17, 3')
    e('s_lshl_b32 s27, s27, 12')
    e('s_add_u32 s26, s26, s27')
    e('s_and_b32 s27, s17, 1')
    e('s_lshl_b32 s27, s27, 11')
    e('s_add_u32 s26, s26, s27')
    e('s_lshl_b32 s27, s18, 7')
    e('s_add_u32 s26, s26, s27')
    e('s_waitcnt vmcnt(0)')
    e('s_barrier')
    for kk in range(4):
        for h in range(2):
            for half in range(2):
                r = 64 + 8*kk + 4*h + 2*half
                e(f'ds_read_b64_tr_b16 v[{r}:{r+1}], v{8+h} offset:{(32*kk+16*half)*64}')
    for kk in range(4):
        for h in range(2):
            e(f's_waitcnt lgkmcnt({14 - 4*kk - 2*h})')
            for c in range(2):
                a = 48 + 8*h + 4*c
                d = 64 + 8*kk + 4*h
                t = 16 + 8*kk + 4*c
                cin = '0' if kk == 0 else f'v[{a}:{a+3}]'
                e(f'v_mfma_f32_16x16x32_bf16 v[{a}:{a+3}], v[{d}:{d+3}], v[{t}:{t+3}], {cin}')
    e('s_nop 5')
    for h in range(2):
        if h == 1: e('s_nop 1')
        for i in range(4):
            e(f'v_cvt_pk_bf16_f32 v{16+4*h+i}, v{48+8*h+2*i}, v{48+8*h+2*i+1}')
        e(f'buffer_store_dwordx4 v[{16+4*h}:{19+4*h}], v10, s[12:15], s26 offen offset:{64*h}')
    lab(f'{name}_end')
    e('s_endpgm')

def p2(name):
    kernel_begin(name)
    e('s_cmp_gt_u32 s2, 256')
    e(f's_cbranch_scc1 {name}_end')
    e('s_load_dwordx2 s[4:5], s[0:1], 56')
    e('s_load_dwordx2 s[6:7], s[0:1], 40')
    e('v_lshrrev_b32 v1, 6, v0')
    e('v_and_b32 v2, 63, v0')
    e('v_readfirstlane_b32 s16, v1')
    e('s_and_b32 s17, s2, 7')
    e('s_bfe_u32 s18, s2, 0x30005')
    e('s_lshl_b32 s18, s18, 3')
    e('s_or_b32 s17, s17, s18')
    e('s_bfe_u32 s18, s2, 0x20003')
    e('s_lshl_b32 s19, s17, 15')
    e('s_lshl_b32 s20, s16, 13')
    e('s_add_u32 s19, s19, s20')
    e('s_add_u32 s21, s19, 4096')
    e('s_mov_b32 m0, s20')
    e('s_add_u32 s22, s20, 4096')
    e('v_bfe_u32 v3, v2, 2, 3')
    e('v_lshlrev_b32 v3, 7, v3')
    e('v_lshrrev_b32 v4, 5, v2')
    e('v_lshl_add_u32 v3, v4, 6, v3')
    e('v_and_b32 v4, 3, v2')
    e('v_lshl_add_u32 v3, v4, 4, v3')
    e('s_waitcnt lgkmcnt(0)')
    srd(8, 4, 0x200000)
    for i in range(4):
        e(f'buffer_load_dwordx4 v3, s[8:11], s19 offen offset:{1024*i} lds')
    e('s_mov_b32 m0, s22')
    srd(12, 6, 0x200000)
    for i in range(4):
        e(f'buffer_load_dwordx4 v3, s[8:11], s21 offen offset:{1024*i} lds')
    e('s_lshl_b32 s23, s18, 9')
    e('s_add_u32 s23, s23, s17')
    e('s_and_b32 s24, s18, 1')
    e('s_lshl_b32 s24, s24, 9')
    e('s_lshr_b32 s25, s18, 1')
    e('s_lshl_b32 s26, s25, 6')
    e('s_add_u32 s24, s24, s26')
    e('s_lshr_b32 s26, s2, 8')
    e('s_lshl_b32 s26, s26, 10')
    e('s_add_u32 s24, s24, s26')
    e('s_lshl_b32 s25, s25, 4')
    e('s_cmp_eq_u32 s17, 0')
    e('s_cselect_b32 s23, s24, s23')
    e('s_cselect_b32 s24, 0xffff, -1')
    e('s_cselect_b32 s25, s25, 0')
    e('v_and_b32 v4, 15, v2')
    e('v_lshrrev_b32 v5, 4, v2')
    e('v_lshrrev_b32 v6, 2, v4')
    e('v_lshl_add_u32 v6, v6, 7, s23')
    e('v_cvt_f32_u32 v6, v6')
    e(f'v_mul_f32 v6, {f32(1/2048)}, v6')
    e('v_and_b32 v7, 1, v2')
    e('v_cvt_f32_u32 v7, v7')
    e(f'v_mul_f32 v7, {f32(-0.25)}, v7')
    e('v_cvt_f32_u32 v8, v5')
    e('v_add_f32 v9, v8, v8')
    e('v_lshlrev_b32 v10, 30, v2')
    e('v_and_b32 v10, 0x80000000, v10')
    e('v_lshrrev_b32 v11, 16, v10')
    e('v_or_b32 v10, v10, v11')
    for jj in range(4):
        so = 8*(jj >> 1) + (jj & 1)
        if so == 0: src = 'v9'
        else:
            e(f'v_add_f32 v11, {f32(so)}, v9'); src = 'v11'
        e(f'v_fma_f32 v12, v6, {src}, v7')
        e('v_cos_f32 v13, v12')
        e('v_sin_f32 v14, -v12')
        e('s_nop 0')
        e(f'v_cvt_pk_bf16_f32 v{16+jj}, v13, v14')
        e(f'v_and_b32 v{16+jj}, s24, v{16+jj}')
        e(f'v_lshlrev_b32 v{16+jj}, s25, v{16+jj}')
        e(f'v_xor_b32 v{20+jj}, v10, v{16+jj}')
    e('v_cvt_f32_u32 v6, v4')
    e('v_mul_f32 v9, 4.0, v8')
    e(f'v_mul_f32 v7, {f32(1/16)}, v6')
    e(f'v_add_f32 v15, {f32(1/32)}, v7')
    for r in range(4):
        if r == 0: src = 'v9'
        else:
            e(f'v_add_f32 v11, {f32(r)}, v9'); src = 'v11'
        for e0 in range(2):
            e(f'v_mul_f32 v12, v{7 if e0 == 0 else 15}, {src}')
            e('v_cos_f32 v13, v12')
            e('v_sin_f32 v14, v12')
            e(f'v_mul_f32 v12, {f32(1/16)}, v12')
            e(f'v_cvt_pk_bf16_f32 v{24+8*e0+r}, v13, -v14')
            e(f'v_cvt_pk_bf16_f32 v{28+8*e0+r}, v14, v13')
            e(f'v_cos_f32 v{40+8*e0+r}, v12')
            e(f'v_sin_f32 v{44+8*e0+r}, v12')
    e('v_lshrrev_b32 v6, 3, v2')
    e('v_lshlrev_b32 v6, 6, v6')
    e('v_and_b32 v7, 3, v2')
    e('v_lshl_add_u32 v6, v7, 4, v6')
    e('v_and_b32 v7, 4, v2')
    e('v_lshl_add_u32 v6, v7, 1, v6')
    e('v_add_u32 v6, s20, v6')
    e('v_lshlrev_b32 v7, 11, v5')
    e('v_lshl_add_u32 v7, v4, 4, v7')
    e('s_lshl_b32 s26, s16, 8')
    e('v_add_u32 v7, s26, v7')
    e('s_lshl_b32 s26, s16, 11')
    e('v_lshl_add_u32 v8, v2, 4, s26')
    e('v_lshl_add_u32 v9, v4, 2, v5')
    e('v_add_u32 v11, 1, v9')
    e('v_lshlrev_b32 v9, 4, v9')
    e('v_sub_u32 v10, 1008, v9')
    e('v_and_b32 v12, 3, v11')
    e('v_and_b32 v11, 60, v11')
    e('v_lshl_add_u32 v11, v12, 6, v11')
    e('s_lshl_b32 s26, s16, 7')
    e('s_add_u32 s26, s26, s23')
    e('s_sub_u32 s27, 2048, s26')
    e('s_lshl_b32 s27, s27, 10')
    e('s_and_b32 s29, s26, 1023')
    e('s_cmp_eq_u32 s2, 256')
    e('s_cselect_b32 s28, s16, 0')
    e('s_lshl_b32 s26, s26, 10')
    for p in range(4):
        e(f's_waitcnt vmcnt({6-2*p})')
        for hb in range(2):
            for half in range(2):
                r = 64 + 8*p + 4*hb + 2*half
                e(f'ds_read_b64_tr_b16 v[{r}:{r+1}], v6 offset:{p*2048 + half*1024 + hb*512}')
    for p in range(4):
        dh, b = p >> 1, p & 1
        for hb in range(2):
            e(f's_waitcnt lgkmcnt({14 - 4*p - 2*hb})')
            a = 96 + 4*(2*b + hb)
            d = 64 + 8*p + 4*hb
            cin = '0' if dh == 0 else f'v[{a}:{a+3}]'
            e(f'v_mfma_f32_16x16x32_bf16 v[{a}:{a+3}], v[{16+4*dh}:{19+4*dh}], v[{d}:{d+3}], {cin}')
    e('s_nop 4')
    for dl in range(4):
        if dl >= 2: e('s_nop 0')
        for e0 in range(2):
            e(f'v_cvt_pk_bf16_f32 v{64+4*e0+dl}, v{96+4*dl+2*e0}, v{96+4*dl+2*e0+1}')
    e('ds_write_b128 v7, v[64:67] offset:32768')
    e('ds_write_b128 v7, v[68:71] offset:33792')
    e('s_waitcnt lgkmcnt(0)')
    e('s_barrier')
    e('s_cmp_lg_u32 s28, 0')
    e(f's_cbranch_scc1 {name}_end')
    e('ds_read_b128 v[72:75], v8 offset:32768')
    e('ds_read_b128 v[76:79], v8 offset:33792')
    for e0 in range(2):
        e(f's_waitcnt lgkmcnt({1-e0})')
        for c in range(2):
            a = 80 + 8*e0 + 4*c
            e(f'v_mfma_f32_16x16x32_bf16 v[{a}:{a+3}], v[{72+4*e0}:{75+4*e0}], v[{24+8*e0+4*c}:{27+8*e0+4*c}], 0')
    e('s_nop 4')
    for e0 in range(2):
        R, I = 80 + 8*e0, 84 + 8*e0
        C, Sn = 40 + 8*e0, 44 + 8*e0
        for r in range(4):
            e(f'v_mul_f32 v{96+r}, v{R+r}, v{C+r}')
            e(f'v_mul_f32 v{100+r}, v{R+r}, v{Sn+r}')
        for r in range(4):
            e(f'v_fma_f32 v{96+r}, -v{I+r}, v{Sn+r}, v{96+r}')
            e(f'v_fmac_f32 v{100+r}, v{I+r}, v{C+r}')
        for r in range(4):
            e(f'v_cvt_pk_bf16_f32 v{64+4*e0+r}, v{96+r}, v{100+r}')
        e('s_nop 1')
        e(f'v_mfma_f32_16x16x32_bf16 v[{104+4*e0}:{107+4*e0}], v[{64+4*e0}:{67+4*e0}], v[24:27], 0')
    e('ds_bpermute_b32 v72, v11, v104')
    e('s_nop 6')
    for r in range(4):
        e(f'v_cvt_pk_bf16_f32 v{64+r}, v{104+r}, v{108+r}')
    e('buffer_store_dwordx4 v[64:67], v9, s[12:15], s26 offen')
    e('s_cmp_eq_u32 s29, 0')
    e(f's_cbranch_scc1 {name}_end')
    for r in range(1, 4):
        e(f'v_cvt_pk_bf16_f32 v{68+r}, v{104+4-r}, v{108+3-r}')
    e('s_waitcnt lgkmcnt(0)')
    e('v_cvt_pk_bf16_f32 v68, v72, v111')
    e('buffer_store_dwordx4 v[68:71], v10, s[12:15], s27 offen')
    lab(f'{name}_end')
    e('s_endpgm')

def empty(name):
    kernel_begin(name)
    e('s_endpgm')

if __name__ == '__main__':
    nempty = int(sys.argv[2]) if len(sys.argv) > 2 else 0
    p1('fnet_p1_kernel'); p2('fnet_p2_kernel')
    if nempty: empty('fnet_e_kernel')
    out = HDR
    out += '; @launch kernel=fnet_p1_kernel grid=(256,1,1) block=(256,1,1) lds=8192\n'
    out += '; @launch kernel=fnet_p2_kernel grid=(257,1,1) block=(256,1,1) lds=40960\n'
    for i in range(nempty):
        out += '; @launch kernel=fnet_e_kernel grid=(256,1,1) block=(256,1,1) lds=0\n'
    out += '.amdgcn_target "amdgcn-amd-amdhsa--gfx950"\n.text\n' + '\n'.join(L) + '\n'
    out += '.section .rodata,"a"\n' + desc('fnet_p1_kernel', 96) + desc('fnet_p2_kernel', 112)
    if nempty: out += desc('fnet_e_kernel', 8)
    open(sys.argv[1], 'w').write(out)
```

```python
import sys, re
def probe(src, dst, k, i, op, nw=1024):
    s = open(src).read()
    code = f'''
.globl fnet_q_kernel
.p2align 8
.type fnet_q_kernel,@function
fnet_q_kernel:
    s_cmp_ge_u32 s2, 1
    s_cbranch_scc1 q_end
    s_load_dwordx2 s[4:5], s[0:1], 56
    v_lshlrev_b32 v1, 6, v0
    v_mov_b32 v2, -1
    v_mov_b32 v3, {'-1' if op == 'min' else '0'}
    s_waitcnt lgkmcnt(0)
    s_mov_b32 s8, s4
    s_and_b32 s9, s5, 0xffff
    s_mov_b32 s10, 0x1000000
    s_mov_b32 s11, 0x20000
    s_mov_b32 s12, {(8<<20) + 4096}
    s_mov_b32 s13, {(8<<20) + k*2048*64 + 4*i + 4096}
    s_mov_b32 s14, 1
q_l1:
    buffer_load_dword v4, v1, s[8:11], s12 offen
    buffer_load_dword v5, v1, s[8:11], s13 offen
    s_waitcnt vmcnt(0)
    v_min_u32 v2, v2, v4
    v_{op}_u32 v3, v3, v5
    s_add_u32 s12, s12, 4096
    s_add_u32 s13, s13, 4096
    s_add_u32 s14, s14, 1
    s_cmp_lt_u32 s14, {nw//64}
    s_cbranch_scc1 q_l1
    s_mov_b32 s14, 0
    s_mov_b32 s15, -1
    s_mov_b32 s16, {'-1' if op == 'min' else '0'}
q_l2:
    v_readlane_b32 s17, v2, s14
    v_readlane_b32 s18, v3, s14
    s_min_u32 s15, s15, s17
    s_{op}_u32 s16, s16, s18
    s_add_u32 s14, s14, 1
    s_cmp_lt_u32 s14, 64
    s_cbranch_scc1 q_l2
    s_sub_u32 s16, s16, s15
    s_min_u32 s16, s16, 3000
    s_lshl_b32 s16, s16, 1
    s_add_u32 s16, s16, 4000
    s_mov_b32 s19, 0
q_l3:
    s_memrealtime s[20:21]
    s_waitcnt lgkmcnt(0)
    s_sub_u32 s20, s20, s15
    s_add_u32 s19, s19, 1
    s_cmp_gt_u32 s19, 20000
    s_cbranch_scc1 q_end
    s_cmp_lt_u32 s20, s16
    s_cbranch_scc1 q_l3
q_end:
    s_endpgm
'''
    d = '''.p2align 6
.amdhsa_kernel fnet_q_kernel
  .amdhsa_next_free_vgpr 8
  .amdhsa_next_free_sgpr 32
  .amdhsa_accum_offset 8
  .amdhsa_group_segment_fixed_size 0
  .amdhsa_kernarg_size 64
  .amdhsa_user_sgpr_count 2
  .amdhsa_user_sgpr_kernarg_segment_ptr 1
  .amdhsa_system_sgpr_workgroup_id_x 1
.end_amdhsa_kernel
'''
    s = s.replace('; @launch grid=', '; @launch kernel=standalone__spectral_fnet__prompt_kernel grid=')
    s = s.replace('.amdgcn_target', '; @launch kernel=fnet_q_kernel grid=(1,1,1) block=(64,1,1) lds=0\n.amdgcn_target')
    s = s.replace('.section .rodata,"a"', code + '.section .rodata,"a"') + d
    open(dst, 'w').write(s)
if __name__ == '__main__':
    src = sys.argv[1]
    for n, spec in enumerate(sys.argv[2:]):
        k, i, op = spec.split(',')[:3]
        nw = int(spec.split(',')[3]) if spec.count(',') > 2 else 1024
        probe(src, f'q{n}.s', int(k), int(i), op, nw)
```

```python
import sys, struct
HDR = open('standalone__spectral_fnet__prompt.s.ref').read().split('; Override launch')[0]
NAME = 'standalone__spectral_fnet__prompt_kernel'
OPT = dict(stamp=0, fstride=4, sleep=1, zsc='sc1', nowait=0)
L = []
def e(s): L.append('    ' + s)
def lab(s): L.append(s + ':')
def f32(x): return '0x%08x' % struct.unpack('<I', struct.pack('<f', x))[0]
NST = [0]
def stamp():
    if OPT['stamp']:
        i = NST[0]; NST[0] += 1
        e(f's_memrealtime s[{64+2*i}:{65+2*i}]')
def flush_stamps():
    if not OPT['stamp']: return
    e('s_waitcnt vmcnt(0)')
    stamp()
    e('s_waitcnt lgkmcnt(0)')
    e('v_mov_b32 v1, 0')
    for i in range(NST[0]):
        e(f'v_writelane_b32 v1, s{64+2*i}, {i}')
    e('s_lshl_b32 s59, s2, 2')
    e('s_add_u32 s59, s59, s16')
    e('s_lshl_b32 s59, s59, 6')
    e(f's_add_u32 s59, s59, {8<<20}')
    e('v_lshlrev_b32 v2, 2, v2')
    e('s_mov_b64 exec, 0xffff')
    e('buffer_store_dword v1, v2, s[12:15], s59 offen')
def srd(d, b, nbytes):
    e(f's_mov_b32 s{d}, s{b}')
    e(f's_and_b32 s{d+1}, s{b+1}, 0xffff')
    e(f's_mov_b32 s{d+2}, {nbytes}')
    e(f's_mov_b32 s{d+3}, 0x20000')
FLAG = 0x1000
ZOFF = 0x100000
XL = 40960

def p1_tables():
    e('v_lshl_add_u32 v6, v4, 2, s16')
    e('v_cvt_f32_u32 v7, v6')
    e(f'v_mul_f32 v7, {f32(1/128)}, v7')
    e('v_cmp_eq_u32 vcc, 0, v6')
    e('v_lshlrev_b32 v8, 2, v5')
    e('v_cvt_f32_u32 v8, v8')
    e('v_cndmask_b32 v9, v7, 0.5, vcc')
    e(f'v_mov_b32 v11, {f32(0.25)}')
    e('v_cndmask_b32 v10, 0, v11, vcc')
    for j in range(8):
        so = 16*(j >> 2) + (j & 3)
        if so == 0: src = 'v8'
        else:
            e(f'v_add_f32 v11, {f32(so)}, v8'); src = 'v11'
        e(f'v_mul_f32 v12, v7, {src}')
        e(f'v_fma_f32 v13, v9, {src}, v10')
        e(f'v_cos_f32 v{48+(j&1)}, v12')
        e(f'v_sin_f32 v{50+(j&1)}, v13')
        if j & 1:
            e(f'v_cvt_pk_bf16_f32 v{16+j//2}, v48, v49')
            e(f'v_cvt_pk_bf16_f32 v{20+j//2}, v50, v51')
    e('s_mov_b32 s22, 0x80008000')
    e('s_bitcmp1_b32 s16, 0')
    e('s_cselect_b32 s23, s22, 0')
    e('s_cselect_b64 vcc, -1, 0')
    e('s_bitcmp1_b32 s16, 1')
    e('s_cselect_b32 s24, s22, 0')
    e('s_xor_b32 s25, s23, s24')
    for i in range(4):
        e(f'v_cndmask_b32 v{24+i}, v{16+i}, v{20+i}, vcc')
        e(f'v_cndmask_b32 v{28+i}, v{20+i}, v{16+i}, vcc')
    for i in range(4):
        e(f'v_xor_b32 v{24+i}, s25, v{24+i}')
        e(f'v_xor_b32 v{28+i}, s24, v{28+i}')
    for i in range(16):
        e(f'v_xor_b32 v{32+i}, s23, v{16+i}')

def p2_setup():
    e('s_and_b32 s17, s2, 7')
    e('s_bfe_u32 s18, s2, 0x30005')
    e('s_lshl_b32 s18, s18, 3')
    e('s_or_b32 s17, s17, s18')
    e('s_bfe_u32 s18, s2, 0x20003')
    e('s_lshl_b32 s19, s17, 15')
    e('s_lshl_b32 s20, s16, 13')
    e('s_add_u32 s19, s19, s20')
    e(f's_add_u32 s19, s19, {ZOFF}')
    e('s_add_u32 s21, s19, 4096')
    e('s_mov_b32 m0, s20')
    e('s_add_u32 s22, s20, 4096')
    e('v_bfe_u32 v3, v2, 2, 3')
    e('v_lshlrev_b32 v3, 7, v3')
    e('v_lshrrev_b32 v6, 5, v2')
    e('v_lshl_add_u32 v3, v6, 6, v3')
    e('v_and_b32 v6, 3, v2')
    e('v_lshl_add_u32 v3, v6, 4, v3')
    e('s_lshl_b32 s23, s18, 9')
    e('s_add_u32 s23, s23, s17')
    e('s_and_b32 s24, s18, 1')
    e('s_lshl_b32 s24, s24, 9')
    e('s_lshr_b32 s25, s18, 1')
    e('s_lshl_b32 s26, s25, 6')
    e('s_add_u32 s24, s24, s26')
    e('s_lshr_b32 s26, s2, 8')
    e('s_lshl_b32 s26, s26, 10')
    e('s_add_u32 s24, s24, s26')
    e('s_lshl_b32 s25, s25, 4')
    e('s_cmp_eq_u32 s17, 0')
    e('s_cselect_b32 s23, s24, s23')
    e('s_cselect_b32 s24, 0xffff, -1')
    e('s_cselect_b32 s25, s25, 0')
    e('v_lshrrev_b32 v6, 2, v4')
    e('v_lshl_add_u32 v6, v6, 7, s23')
    e('v_cvt_f32_u32 v6, v6')
    e(f'v_mul_f32 v6, {f32(1/2048)}, v6')
    e('v_and_b32 v7, 1, v2')
    e('v_cvt_f32_u32 v7, v7')
    e(f'v_mul_f32 v7, {f32(-0.25)}, v7')
    e('v_cvt_f32_u32 v8, v5')
    e('v_add_f32 v9, v8, v8')
    e('v_lshlrev_b32 v10, 30, v2')
    e('v_and_b32 v10, 0x80000000, v10')
    e('v_lshrrev_b32 v11, 16, v10')
    e('v_or_b32 v10, v10, v11')
    for jj in range(4):
        so = 8*(jj >> 1) + (jj & 1)
        if so == 0: src = 'v9'
        else:
            e(f'v_add_f32 v11, {f32(so)}, v9'); src = 'v11'
        e(f'v_fma_f32 v12, v6, {src}, v7')
        e('v_cos_f32 v13, v12')
        e('v_sin_f32 v14, -v12')
        e('s_nop 0')
        e(f'v_cvt_pk_bf16_f32 v{16+jj}, v13, v14')
        e(f'v_and_b32 v{16+jj}, s24, v{16+jj}')
        e(f'v_lshlrev_b32 v{16+jj}, s25, v{16+jj}')
        e(f'v_xor_b32 v{20+jj}, v10, v{16+jj}')
def p2_setup_b():
    e('v_cvt_f32_u32 v6, v4')
    e('v_mul_f32 v9, 4.0, v8')
    e(f'v_mul_f32 v7, {f32(1/16)}, v6')
    e(f'v_add_f32 v15, {f32(1/32)}, v7')
    for r in range(4):
        if r == 0: src = 'v9'
        else:
            e(f'v_add_f32 v11, {f32(r)}, v9'); src = 'v11'
        for e0 in range(2):
            e(f'v_mul_f32 v12, v{7 if e0 == 0 else 15}, {src}')
            e('v_cos_f32 v13, v12')
            e('v_sin_f32 v14, v12')
            e(f'v_mul_f32 v12, {f32(1/16)}, v12')
            e(f'v_cvt_pk_bf16_f32 v{24+8*e0+r}, v13, -v14')
            e(f'v_cvt_pk_bf16_f32 v{28+8*e0+r}, v14, v13')
            e(f'v_cos_f32 v{40+8*e0+r}, v12')
            e(f'v_sin_f32 v{44+8*e0+r}, v12')
    e('v_lshrrev_b32 v6, 3, v2')
    e('v_lshlrev_b32 v6, 6, v6')
    e('v_and_b32 v7, 3, v2')
    e('v_lshl_add_u32 v6, v7, 4, v6')
    e('v_and_b32 v7, 4, v2')
    e('v_lshl_add_u32 v6, v7, 1, v6')
    e('v_add_u32 v6, s20, v6')
    e('v_lshlrev_b32 v7, 11, v5')
    e('v_lshl_add_u32 v7, v4, 4, v7')
    e('s_lshl_b32 s26, s16, 8')
    e('v_add_u32 v7, s26, v7')
    e('s_lshl_b32 s26, s16, 11')
    e('v_lshl_add_u32 v8, v2, 4, s26')
    e('v_lshl_add_u32 v9, v4, 2, v5')
    e('v_add_u32 v11, 1, v9')
    e('v_lshlrev_b32 v9, 4, v9')
    e('v_sub_u32 v10, 1008, v9')
    e('v_and_b32 v12, 3, v11')
    e('v_and_b32 v11, 60, v11')
    e('v_lshl_add_u32 v11, v12, 6, v11')
    e('s_lshl_b32 s26, s16, 7')
    e('s_add_u32 s26, s26, s23')
    e('s_sub_u32 s27, 2048, s26')
    e('s_lshl_b32 s27, s27, 10')
    e('s_and_b32 s29, s26, 1023')
    e('s_cmp_eq_u32 s2, 256')
    e('s_cselect_b32 s28, s16, 0')
    e('s_lshl_b32 s26, s26, 10')

def p2_tail():
    for dl in range(4):
        if dl >= 2: e('s_nop 0')
        for e0 in range(2):
            e(f'v_cvt_pk_bf16_f32 v{64+4*e0+dl}, v{96+4*dl+2*e0}, v{96+4*dl+2*e0+1}')
    e('ds_write_b128 v7, v[64:67] offset:32768')
    e('ds_write_b128 v7, v[68:71] offset:33792')
    e('s_waitcnt lgkmcnt(0)')
    e('s_barrier')
    stamp()
    e('s_cmp_lg_u32 s28, 0')
    e('s_cbranch_scc1 L_extra')
    e('ds_read_b128 v[72:75], v8 offset:32768')
    e('ds_read_b128 v[76:79], v8 offset:33792')
    for e0 in range(2):
        e(f's_waitcnt lgkmcnt({1-e0})')
        for c in range(2):
            a = 80 + 8*e0 + 4*c
            e(f'v_mfma_f32_16x16x32_bf16 v[{a}:{a+3}], v[{72+4*e0}:{75+4*e0}], v[{24+8*e0+4*c}:{27+8*e0+4*c}], 0')
    e('s_nop 4')
    for e0 in range(2):
        R, I = 80 + 8*e0, 84 + 8*e0
        C, Sn = 40 + 8*e0, 44 + 8*e0
        for r in range(4):
            e(f'v_mul_f32 v{96+r}, v{R+r}, v{C+r}')
            e(f'v_mul_f32 v{100+r}, v{R+r}, v{Sn+r}')
        for r in range(4):
            e(f'v_fma_f32 v{96+r}, -v{I+r}, v{Sn+r}, v{96+r}')
            e(f'v_fmac_f32 v{100+r}, v{I+r}, v{C+r}')
        for r in range(4):
            e(f'v_cvt_pk_bf16_f32 v{64+4*e0+r}, v{96+r}, v{100+r}')
        e('s_nop 1')
        e(f'v_mfma_f32_16x16x32_bf16 v[{104+4*e0}:{107+4*e0}], v[{64+4*e0}:{67+4*e0}], v[24:27], 0')
    e('ds_bpermute_b32 v72, v11, v104')
    e('s_nop 6')
    for r in range(4):
        e(f'v_cvt_pk_bf16_f32 v{64+r}, v{104+r}, v{108+r}')
    e('buffer_store_dwordx4 v[64:67], v9, s[32:35], s26 offen')
    e('s_cmp_eq_u32 s29, 0')
    e('s_cbranch_scc1 L_end')
    for r in range(1, 4):
        e(f'v_cvt_pk_bf16_f32 v{68+r}, v{104+4-r}, v{108+3-r}')
    e('s_waitcnt lgkmcnt(0)')
    e('v_cvt_pk_bf16_f32 v68, v72, v111')
    e('buffer_store_dwordx4 v[68:71], v10, s[32:35], s27 offen')
    stamp()
    flush_stamps()
    e('s_endpgm')
    lab('L_extra')
    e('v_mov_b32 v1, s36')
    e('v_mov_b32 v2, 0')
    e('s_mov_b64 exec, 1')
    e('buffer_store_dword v1, v2, s[12:15], 0 offen')
    lab('L_end')
    e('s_endpgm')

def gen():
    fs = OPT['fstride']; fsh = fs.bit_length() - 1
    L.append(f'.globl {NAME}\n.p2align 8\n.type {NAME},@function\n{NAME}:')
    e('s_cmp_gt_u32 s2, 256')
    e('s_cbranch_scc1 L_end')
    stamp()
    e('s_load_dwordx2 s[4:5], s[0:1], 0')
    e('s_load_dwordx2 s[6:7], s[0:1], 56')
    e('s_load_dwordx2 s[30:31], s[0:1], 40')
    e('v_lshrrev_b32 v1, 6, v0')
    e('v_and_b32 v2, 63, v0')
    e('v_readfirstlane_b32 s16, v1')
    e('s_and_b32 s17, s2, 7')
    e('s_lshl_b32 s17, s17, 1')
    e('s_bfe_u32 s18, s2, 0x10003')
    e('s_or_b32 s17, s17, s18')
    e('s_lshr_b32 s18, s2, 4')
    e('v_lshrrev_b32 v3, 2, v0')
    e('v_lshrrev_b32 v4, 3, v0')
    e('v_and_b32 v4, 2, v4')
    e('v_xor_b32 v4, v4, v0')
    e('v_and_b32 v4, 3, v4')
    e('v_lshlrev_b32 v3, 14, v3')
    e('v_lshl_add_u32 v3, v4, 4, v3')
    e('s_lshl_b32 s19, s18, 10')
    e('s_lshl_b32 s20, s17, 6')
    e('s_add_u32 s19, s19, s20')
    e('s_add_u32 s20, s19, 0x100000')
    e('s_lshl_b32 s21, s16, 10')
    e(f's_add_u32 s21, s21, {XL}')
    e('s_mov_b32 m0, s21')
    e('s_add_u32 s21, s21, 4096')
    e('v_and_b32 v4, 15, v2')
    e('v_lshrrev_b32 v5, 4, v2')
    e('s_waitcnt lgkmcnt(0)')
    e('s_load_dword s36, s[6:7], 0')
    srd(8, 4, 0x200000)
    srd(12, 6, 0x1000000)
    srd(32, 30, 0x200000)
    e('s_cmp_eq_u32 s2, 256')
    e('s_cbranch_scc1 L_p2x')
    e('buffer_load_dwordx4 v3, s[8:11], s19 offen lds')
    e('s_mov_b32 m0, s21')
    e('s_nop 0')
    e('buffer_load_dwordx4 v3, s[8:11], s20 offen lds')
    stamp()
    p1_tables()
    e('v_lshrrev_b32 v8, 2, v2')
    e('v_lshlrev_b32 v8, 6, v8')
    e('v_and_b32 v9, 3, v2')
    e('v_lshl_add_u32 v8, v9, 3, v8')
    e('v_and_b32 v9, 1, v5')
    e('v_lshl_add_u32 v8, v9, 5, v8')
    e('v_xor_b32 v9, 32, v8')
    e('v_lshlrev_b32 v10, 15, v6')
    e('v_lshl_add_u32 v10, v5, 4, v10')
    e('s_bfe_u32 s26, s17, 0x20001')
    e('s_lshl_b32 s26, s26, 6')
    e('s_lshr_b32 s27, s17, 3')
    e('s_lshl_b32 s27, s27, 5')
    e('s_add_u32 s26, s26, s27')
    e('s_and_b32 s27, s17, 1')
    e('s_lshl_b32 s27, s27, 4')
    e('s_add_u32 s26, s26, s27')
    e('s_add_u32 s26, s26, s18')
    e('s_lshl_b32 s27, s16, 8')
    e('s_add_u32 s37, s26, s27')
    e(f's_lshl_b32 s37, s37, {fsh}')
    e(f's_add_u32 s37, s37, {FLAG}')
    e('s_lshl_b32 s26, s26, 7')
    e(f's_add_u32 s26, s26, {ZOFF}')
    stamp()
    e('s_waitcnt vmcnt(0) lgkmcnt(0)')
    stamp()
    e('s_barrier')
    for kk in range(4):
        for h in range(2):
            for half in range(2):
                r = 64 + 8*kk + 4*h + 2*half
                e(f'ds_read_b64_tr_b16 v[{r}:{r+1}], v{8+h} offset:{XL + (32*kk+16*half)*64}')
    for kk in range(4):
        for h in range(2):
            e(f's_waitcnt lgkmcnt({14 - 4*kk - 2*h})')
            for c in range(2):
                a = 48 + 8*h + 4*c
                d = 64 + 8*kk + 4*h
                t = 16 + 8*kk + 4*c
                cin = '0' if kk == 0 else f'v[{a}:{a+3}]'
                e(f'v_mfma_f32_16x16x32_bf16 v[{a}:{a+3}], v[{d}:{d+3}], v[{t}:{t+3}], {cin}')
    e('s_add_u32 s36, s36, 1')
    e('v_mov_b32 v1, s36')
    e('v_mov_b32 v112, 0')
    e('s_nop 2')
    for h in range(2):
        if h == 1: e('s_nop 1')
        for i in range(4):
            e(f'v_cvt_pk_bf16_f32 v{96+4*h+i}, v{48+8*h+2*i}, v{48+8*h+2*i+1}')
        e(f'buffer_store_dwordx4 v[{96+4*h}:{99+4*h}], v10, s[12:15], s26 offen offset:{64*h} sc1')
    stamp()
    if not OPT['nowait']:
        p2_setup()
        e('s_waitcnt vmcnt(0)')
    stamp()
    e('s_mov_b64 exec, 1')
    e('buffer_store_dword v1, v112, s[12:15], s37 offen sc1')
    e('s_mov_b64 exec, -1')
    if OPT['nowait']: p2_setup()
    e('s_branch L_p2')
    lab('L_p2x')
    e('s_waitcnt lgkmcnt(0)')
    e('s_add_u32 s36, s36, 1')
    p2_setup()
    lab('L_p2')
    p2_setup_b()
    e('s_and_b32 s38, s17, 3')
    e('s_lshl_b32 s38, s38, 2')
    e('s_add_u32 s38, s38, s16')
    e(f's_lshl_b32 s38, s38, {6+fsh}')
    e(f's_add_u32 s38, s38, {FLAG}')
    e(f'v_lshlrev_b32 v12, {fsh}, v2')
    e('s_mov_b32 s39, 0')
    stamp()
    lab('L_poll')
    e('buffer_load_dword v13, v12, s[12:15], s38 offen sc1')
    e('s_add_u32 s39, s39, 1')
    e('s_cmp_gt_u32 s39, 100000')
    e('s_cbranch_scc1 L_go')
    e('s_waitcnt vmcnt(0)')
    e('v_cmp_ne_u32 vcc, s36, v13')
    e('s_cbranch_vccz L_go')
    if OPT['sleep']: e(f's_sleep {OPT["sleep"]}')
    e('s_branch L_poll')
    lab('L_go')
    stamp()
    for i in range(4):
        e(f'buffer_load_dwordx4 v3, s[12:15], s19 offen offset:{1024*i} {OPT["zsc"]} lds')
    e('s_mov_b32 m0, s22')
    e('s_nop 0')
    for i in range(4):
        e(f'buffer_load_dwordx4 v3, s[12:15], s21 offen offset:{1024*i} {OPT["zsc"]} lds')
    for p in range(4):
        e(f's_waitcnt vmcnt({6-2*p})')
        for hb in range(2):
            for half in range(2):
                r = 64 + 8*p + 4*hb + 2*half
                e(f'ds_read_b64_tr_b16 v[{r}:{r+1}], v6 offset:{p*2048 + half*1024 + hb*512}')
    stamp()
    for p in range(4):
        dh, b = p >> 1, p & 1
        for hb in range(2):
            e(f's_waitcnt lgkmcnt({14 - 4*p - 2*hb})')
            a = 96 + 4*(2*b + hb)
            d = 64 + 8*p + 4*hb
            cin = '0' if dh == 0 else f'v[{a}:{a+3}]'
            e(f'v_mfma_f32_16x16x32_bf16 v[{a}:{a+3}], v[{16+4*dh}:{19+4*dh}], v[{d}:{d+3}], {cin}')
    e('s_nop 4')
    p2_tail()

def finish(path, vgpr, lds, nwg=257, blk=256):
    out = HDR + f'; @launch grid=({nwg},1,1) block=({blk},1,1) lds={lds}\n'
    out += '.amdgcn_target "amdgcn-amd-amdhsa--gfx950"\n.text\n' + '\n'.join(L) + '\n'
    out += f'''.section .rodata,"a"
.p2align 6
.amdhsa_kernel {NAME}
  .amdhsa_next_free_vgpr {vgpr}
  .amdhsa_next_free_sgpr {100 if OPT['stamp'] else 64}
  .amdhsa_accum_offset {(vgpr+3)//4*4}
  .amdhsa_group_segment_fixed_size 0
  .amdhsa_kernarg_size 64
  .amdhsa_user_sgpr_count 2
  .amdhsa_user_sgpr_kernarg_segment_ptr 1
  .amdhsa_system_sgpr_workgroup_id_x 1
.end_amdhsa_kernel
'''
    open(path, 'w').write(out)
def parse():
    for a in sys.argv[2:]:
        k, v = a.split('=')
        OPT[k] = int(v) if v.lstrip('-').isdigit() else v
if __name__ == '__main__':
    parse(); gen(); finish(sys.argv[1], 116, 49152)
```

```python
from gen2 import *
import gen2
OPT.update(sleep=0, rsleep=0, stsc='sc1', cnt=0, wst=1)
def gen():
    L.append(f'.globl {NAME}\n.p2align 8\n.type {NAME},@function\n{NAME}:')
    e('s_cmp_gt_u32 s2, 256')
    e('s_cbranch_scc1 L_end')
    stamp()
    e('s_load_dwordx2 s[4:5], s[0:1], 0')
    e('s_load_dwordx2 s[6:7], s[0:1], 56')
    e('s_load_dwordx2 s[30:31], s[0:1], 40')
    e('v_lshrrev_b32 v1, 6, v0')
    e('v_and_b32 v2, 63, v0')
    e('v_readfirstlane_b32 s16, v1')
    e('s_and_b32 s17, s2, 7')
    e('s_lshl_b32 s17, s17, 1')
    e('s_bfe_u32 s18, s2, 0x10003')
    e('s_or_b32 s17, s17, s18')
    e('s_lshr_b32 s18, s2, 4')
    e('v_lshrrev_b32 v3, 2, v0')
    e('v_lshrrev_b32 v4, 3, v0')
    e('v_and_b32 v4, 2, v4')
    e('v_xor_b32 v4, v4, v0')
    e('v_and_b32 v4, 3, v4')
    e('v_lshlrev_b32 v3, 14, v3')
    e('v_lshl_add_u32 v3, v4, 4, v3')
    e('s_lshl_b32 s19, s18, 10')
    e('s_lshl_b32 s20, s17, 6')
    e('s_add_u32 s19, s19, s20')
    e('s_add_u32 s20, s19, 0x100000')
    e('s_lshl_b32 s21, s16, 10')
    e(f's_add_u32 s21, s21, {XL}')
    e('s_mov_b32 m0, s21')
    e('s_add_u32 s21, s21, 4096')
    e('v_and_b32 v4, 15, v2')
    e('v_lshrrev_b32 v5, 4, v2')
    e('s_mov_b32 s10, 0x200000')
    e('s_mov_b32 s11, 0x20000')
    e('s_mov_b32 s37, 0x00010001')
    e('s_cmp_eq_u32 s2, 256')
    e('s_waitcnt lgkmcnt(0)')
    e('s_mov_b32 s8, s4')
    e('s_mov_b32 s9, s5')
    e('s_load_dword s36, s[6:7], 0')
    e('s_cbranch_scc1 L_p2x')
    e('buffer_load_dwordx4 v3, s[8:11], s19 offen lds')
    e('s_mov_b32 m0, s21')
    e('s_nop 0')
    e('buffer_load_dwordx4 v3, s[8:11], s20 offen lds')
    stamp()
    srd(12, 6, 0x1000000)
    p1_tables()
    e('v_lshrrev_b32 v8, 2, v2')
    e('v_lshlrev_b32 v8, 6, v8')
    e('v_and_b32 v9, 3, v2')
    e('v_lshl_add_u32 v8, v9, 3, v8')
    e('v_and_b32 v9, 1, v5')
    e('v_lshl_add_u32 v8, v9, 5, v8')
    e('v_xor_b32 v9, 32, v8')
    e('v_lshlrev_b32 v10, 15, v6')
    e('v_lshl_add_u32 v10, v5, 4, v10')
    e('s_bfe_u32 s26, s17, 0x20001')
    e('s_lshl_b32 s26, s26, 6')
    e('s_lshr_b32 s27, s17, 3')
    e('s_lshl_b32 s27, s27, 5')
    e('s_add_u32 s26, s26, s27')
    e('s_and_b32 s27, s17, 1')
    e('s_lshl_b32 s27, s27, 4')
    e('s_add_u32 s26, s26, s27')
    e('s_add_u32 s26, s26, s18')
    e('s_lshl_b32 s26, s26, 7')
    e(f's_add_u32 s26, s26, {ZOFF}')
    e('v_lshlrev_b32 v11, 2, v5')
    e('s_waitcnt lgkmcnt(0)')
    e('s_add_u32 s36, s36, 0x11111111')
    e('v_lshrrev_b32 v12, v11, s36')
    for i in range(1, 4):
        e(f'v_lshrrev_b32 v{12+i}, {i}, v12')
    stamp()
    e('s_waitcnt vmcnt(0)')
    stamp()
    e('s_barrier')
    for kk in range(4):
        for h in range(2):
            for half in range(2):
                r = 64 + 8*kk + 4*h + 2*half
                e(f'ds_read_b64_tr_b16 v[{r}:{r+1}], v{8+h} offset:{XL + (32*kk+16*half)*64}')
    for kk in range(4):
        for h in range(2):
            e(f's_waitcnt lgkmcnt({14 - 4*kk - 2*h})')
            for c in range(2):
                a = 48 + 8*h + 4*c
                d = 64 + 8*kk + 4*h
                t = 16 + 8*kk + 4*c
                cin = '0' if kk == 0 else f'v[{a}:{a+3}]'
                e(f'v_mfma_f32_16x16x32_bf16 v[{a}:{a+3}], v[{d}:{d+3}], v[{t}:{t+3}], {cin}')
    e('s_nop 3')
    for h in range(2):
        for i in range(4):
            e(f'v_cvt_pk_bf16_f32 v{96+4*h+i}, v{48+8*h+2*i}, v{48+8*h+2*i+1}')
        for i in range(4):
            e(f'v_bfi_b32 v{96+4*h+i}, s37, v{12+i}, v{96+4*h+i}')
        e(f'buffer_store_dwordx4 v[{96+4*h}:{99+4*h}], v10, s[12:15], s26 offen offset:{64*h} {OPT["stsc"]}')
    stamp()
    e('s_branch L_p2')
    lab('L_p2x')
    srd(12, 6, 0x1000000)
    e('s_waitcnt lgkmcnt(0)')
    e('s_add_u32 s36, s36, 0x11111111')
    lab('L_p2')
    srd(32, 30, 0x200000)
    p2_setup()
    p2_setup_b()
    e('v_and_b32 v12, 12, v4')
    e('v_bfe_u32 v13, v4, 1, 1')
    e('v_add_u32 v12, v12, v13')
    e('v_and_b32 v13, 1, v4')
    e('v_lshl_add_u32 v12, v13, 4, v12')
    e('v_lshrrev_b32 v12, v12, s36')
    e('v_lshlrev_b32 v13, 14, v12')
    e('v_bfi_b32 v113, 1, v12, v13')
    e('s_mov_b32 s39, 0')
    stamp()
    if OPT['wst']: e('s_waitcnt vmcnt(0)')
    if OPT['sleep']: e(f's_sleep {OPT["sleep"]}')
    stamp()
    lab('L_round')
    for i in range(4):
        e(f'buffer_load_dwordx4 v3, s[12:15], s19 offen offset:{1024*i} {OPT["zsc"]} lds')
    e('s_mov_b32 m0, s22')
    e('s_add_u32 s39, s39, 1')
    for i in range(4):
        e(f'buffer_load_dwordx4 v3, s[12:15], s21 offen offset:{1024*i} {OPT["zsc"]} lds')
    e('s_mov_b32 m0, s20')
    for p in range(4):
        e(f's_waitcnt vmcnt({6-2*p})')
        for hb in range(2):
            for half in range(2):
                r = 64 + 8*p + 4*hb + 2*half
                e(f'ds_read_b64_tr_b16 v[{r}:{r+1}], v6 offset:{p*2048 + half*1024 + hb*512}')
    for p in range(4):
        dh, b = p >> 1, p & 1
        for hb in range(2):
            e(f's_waitcnt lgkmcnt({14 - 4*p - 2*hb})')
            a = 96 + 4*(2*b + hb)
            d = 64 + 8*p + 4*hb
            cin = '0' if dh == 0 else f'v[{a}:{a+3}]'
            e(f'v_mfma_f32_16x16x32_bf16 v[{a}:{a+3}], v[{16+4*dh}:{19+4*dh}], v[{d}:{d+3}], {cin}')
            e(f'v_bitop3_b32 v114, v{d}, v{d+1}, v113 bitop3:0x7e')
            e(f'v_bitop3_b32 v115, v{d+2}, v{d+3}, v113 bitop3:0x7e')
            if p == 0 and hb == 0: e('v_or_b32 v112, v114, v115')
            else: e('v_or3_b32 v112, v112, v114, v115')
    e('v_and_b32 v112, s37, v112')
    e('v_cmp_ne_u32 vcc, 0, v112')
    e('s_cbranch_vccz L_go')
    if OPT['rsleep']: e(f's_sleep {OPT["rsleep"]}')
    e('s_cmp_lt_u32 s39, 100000')
    e('s_cbranch_scc1 L_round')
    lab('L_go')
    stamp()
    if OPT['cnt']:
        e('s_waitcnt lgkmcnt(0)')
        e('s_mul_i32 s39, s39, 100')
        e('s_add_u32 s66, s64, s39')
    p2_tail()
if __name__ == '__main__':
    parse(); gen(); finish(sys.argv[1], 116, 49152)
```

```python
import sys, re
def probe(src, dst, k, i, op, nw=1024):
    s = open(src).read()
    code = f'''
.globl fnet_q_kernel
.p2align 8
.type fnet_q_kernel,@function
fnet_q_kernel:
    s_cmp_ge_u32 s2, 1
    s_cbranch_scc1 q_end
    s_load_dwordx2 s[4:5], s[0:1], 56
    v_lshlrev_b32 v1, 6, v0
    v_mov_b32 v2, -1
    v_mov_b32 v3, {'-1' if op == 'min' else '0'}
    s_waitcnt lgkmcnt(0)
    s_mov_b32 s8, s4
    s_and_b32 s9, s5, 0xffff
    s_mov_b32 s10, 0x1000000
    s_mov_b32 s11, 0x20000
    s_mov_b32 s12, {(8<<20) + 4096}
    s_mov_b32 s13, {(8<<20) + k*2048*64 + 4*i + 4096}
    s_mov_b32 s14, 1
q_l1:
    buffer_load_dword v4, v1, s[8:11], s12 offen
    buffer_load_dword v5, v1, s[8:11], s13 offen
    s_waitcnt vmcnt(0)
    v_min_u32 v2, v2, v4
    v_{'add' if op=='avg' else op}_u32 v3, v3, v5
    s_add_u32 s12, s12, 4096
    s_add_u32 s13, s13, 4096
    s_add_u32 s14, s14, 1
    s_cmp_lt_u32 s14, {nw//64}
    s_cbranch_scc1 q_l1
    s_mov_b32 s14, 0
    s_mov_b32 s15, -1
    s_mov_b32 s16, {'-1' if op == 'min' else '0'}
q_l2:
    v_readlane_b32 s17, v2, s14
    v_readlane_b32 s18, v3, s14
    s_min_u32 s15, s15, s17
    s_{'add' if op=='avg' else op}_u32 s16, s16, s18
    s_add_u32 s14, s14, 1
    s_cmp_lt_u32 s14, 64
    s_cbranch_scc1 q_l2
    s_mul_i32 s17, s15, {960 if op=='avg' else 1}
    s_sub_u32 s16, s16, s17
    s_min_u32 s16, s16, {960*1000 if op=='avg' else 1000}
    s_mul_i32 s16, s16, {546 if op=='avg' else 8*65536}
    s_lshr_b32 s16, s16, 16
    s_add_u32 s16, s16, 4000
    s_mov_b32 s19, 0
q_l3:
    s_memrealtime s[20:21]
    s_waitcnt lgkmcnt(0)
    s_sub_u32 s20, s20, s15
    s_add_u32 s19, s19, 1
    s_cmp_gt_u32 s19, 20000
    s_cbranch_scc1 q_end
    s_cmp_lt_u32 s20, s16
    s_cbranch_scc1 q_l3
q_end:
    s_endpgm
'''
    d = '''.p2align 6
.amdhsa_kernel fnet_q_kernel
  .amdhsa_next_free_vgpr 8
  .amdhsa_next_free_sgpr 32
  .amdhsa_accum_offset 8
  .amdhsa_group_segment_fixed_size 0
  .amdhsa_kernarg_size 64
  .amdhsa_user_sgpr_count 2
  .amdhsa_user_sgpr_kernarg_segment_ptr 1
  .amdhsa_system_sgpr_workgroup_id_x 1
.end_amdhsa_kernel
'''
    s = s.replace('; @launch grid=', '; @launch kernel=standalone__spectral_fnet__prompt_kernel grid=')
    s = s.replace('.amdgcn_target', '; @launch kernel=fnet_q_kernel grid=(1,1,1) block=(64,1,1) lds=0\n.amdgcn_target')
    s = s.replace('.section .rodata,"a"', code + '.section .rodata,"a"') + d
    open(dst, 'w').write(s)
if __name__ == '__main__':
    src = sys.argv[1]
    for n, spec in enumerate(sys.argv[2:]):
        k, i, op = spec.split(',')[:3]
        nw = int(spec.split(',')[3]) if spec.count(',') > 2 else 1024
        probe(src, f'q{n}.s', int(k), int(i), op, nw)
```

```python
from gen2 import *
import gen2
OPT.update(pf=0, vtag=0, zoff=0, sleep=0, rsleep=0, stsc='sc1', cnt=0, full=0, half=0, wst=1)
def gen():
    global ZOFF
    if OPT['zoff']:
        ZOFF = OPT['zoff']<<20; gen2.ZOFF = ZOFF
    L.append(f'.globl {NAME}\n.p2align 8\n.type {NAME},@function\n{NAME}:')
    e('s_cmp_gt_u32 s2, 256')
    e('s_cbranch_scc1 L_end')
    stamp()
    e('s_load_dwordx2 s[4:5], s[0:1], 0')
    e('s_load_dwordx2 s[6:7], s[0:1], 56')
    e('s_load_dwordx2 s[30:31], s[0:1], 40')
    if OPT['pf']:
        e('s_getpc_b64 s[40:41]')
        lab('L_pc')
        e(f'v_min_u32 v1, (L_end-L_pc)/64, v0')
        e('v_lshlrev_b32 v1, 6, v1')
        e('global_load_dword v115, v1, s[40:41]')
    e('v_lshrrev_b32 v1, 6, v0')
    e('v_and_b32 v2, 63, v0')
    e('v_readfirstlane_b32 s16, v1')
    e('s_and_b32 s17, s2, 7')
    e('s_lshl_b32 s17, s17, 1')
    e('s_bfe_u32 s18, s2, 0x10003')
    e('s_or_b32 s17, s17, s18')
    e('s_lshr_b32 s18, s2, 4')
    e('v_lshrrev_b32 v3, 2, v0')
    e('v_lshrrev_b32 v4, 3, v0')
    e('v_and_b32 v4, 2, v4')
    e('v_xor_b32 v4, v4, v0')
    e('v_and_b32 v4, 3, v4')
    e('v_lshlrev_b32 v3, 14, v3')
    e('v_lshl_add_u32 v3, v4, 4, v3')
    e('s_lshl_b32 s19, s18, 10')
    e('s_lshl_b32 s20, s17, 6')
    e('s_add_u32 s19, s19, s20')
    e('s_add_u32 s20, s19, 0x100000')
    e('s_lshl_b32 s21, s16, 10')
    e(f's_add_u32 s21, s21, {XL}')
    e('s_mov_b32 m0, s21')
    e('s_add_u32 s21, s21, 4096')
    e('v_and_b32 v4, 15, v2')
    e('v_lshrrev_b32 v5, 4, v2')
    e('s_mov_b32 s10, 0x200000')
    e('s_mov_b32 s11, 0x20000')
    e('s_mov_b32 s37, 0x00010001')
    e('s_cmp_eq_u32 s2, 256')
    e('s_waitcnt lgkmcnt(0)')
    e('s_mov_b32 s8, s4')
    e('s_mov_b32 s9, s5')
    if not OPT['vtag']: e('s_load_dword s36, s[6:7], 0')
    e('s_cbranch_scc1 L_p2x')
    e('buffer_load_dwordx4 v3, s[8:11], s19 offen lds')
    e('s_mov_b32 m0, s21')
    e('s_nop 0')
    e('buffer_load_dwordx4 v3, s[8:11], s20 offen lds')
    stamp()
    srd(12, 6, 0x10000000)
    if OPT['vtag']: e('buffer_load_dword v15, off, s[12:15], 0')
    p1_tables()
    e('v_lshrrev_b32 v8, 2, v2')
    e('v_lshlrev_b32 v8, 6, v8')
    e('v_and_b32 v9, 3, v2')
    e('v_lshl_add_u32 v8, v9, 3, v8')
    e('v_and_b32 v9, 1, v5')
    e('v_lshl_add_u32 v8, v9, 5, v8')
    e('v_xor_b32 v9, 32, v8')
    e('v_lshlrev_b32 v10, 15, v6')
    e('v_lshl_add_u32 v10, v5, 4, v10')
    if OPT['full']:
        e('v_and_b32 v11, 1, v4')
        e('v_mul_u32_u24 v11, 0x1ffc0, v11')
        e('v_sub_u32 v10, v10, v11')
        e('v_add_u32 v1, 0x1ffc0, v10')
    e('s_bfe_u32 s26, s17, 0x20001')
    e('s_lshl_b32 s26, s26, 6')
    e('s_lshr_b32 s27, s17, 3')
    e('s_lshl_b32 s27, s27, 5')
    e('s_add_u32 s26, s26, s27')
    e('s_and_b32 s27, s17, 1')
    e('s_lshl_b32 s27, s27, 4')
    e('s_add_u32 s26, s26, s27')
    e('s_add_u32 s26, s26, s18')
    e('s_lshl_b32 s26, s26, 7')
    e(f's_add_u32 s26, s26, {ZOFF}')
    e('v_lshlrev_b32 v11, 2, v5')
    def tagregs():
        e('s_add_u32 s36, s36, 0x11111111')
        e('v_lshrrev_b32 v12, v11, s36')
        for i in range(1, 4):
            e(f'v_lshrrev_b32 v{12+i}, {i}, v12')
    if not OPT['vtag']:
        e('s_waitcnt lgkmcnt(0)')
        tagregs()
    stamp()
    e(f's_waitcnt vmcnt({OPT["vtag"]})')
    stamp()
    e('s_barrier')
    for kk in range(4):
        for h in range(2):
            for half in range(2):
                r = 64 + 8*kk + 4*h + 2*half
                e(f'ds_read_b64_tr_b16 v[{r}:{r+1}], v{8+h} offset:{XL + (32*kk+16*half)*64}')
    for kk in range(4):
        for h in range(2):
            e(f's_waitcnt lgkmcnt({14 - 4*kk - 2*h})')
            for c in range(2):
                a = 48 + 8*h + 4*c
                d = 64 + 8*kk + 4*h
                t = 16 + 8*kk + 4*c
                cin = '0' if kk == 0 else f'v[{a}:{a+3}]'
                e(f'v_mfma_f32_16x16x32_bf16 v[{a}:{a+3}], v[{d}:{d+3}], v[{t}:{t+3}], {cin}')
    if OPT['vtag']:
        e('s_waitcnt vmcnt(0)')
        e('v_readfirstlane_b32 s36, v15')
        e('s_nop 0')
        tagregs()
    else: e('s_nop 3')
    for h in range(2):
        for i in range(4):
            e(f'v_cvt_pk_bf16_f32 v{96+4*h+i}, v{48+8*h+2*i}, v{48+8*h+2*i+1}')
        for i in range(4):
            e(f'v_bfi_b32 v{96+4*h+i}, s37, v{12+i}, v{96+4*h+i}')
        e(f'buffer_store_dwordx4 v[{96+4*h}:{99+4*h}], v{1 if (h and OPT["full"]) else 10}, s[12:15], s26 offen offset:{64*h} {OPT["stsc"]}')
    stamp()
    e('s_branch L_p2')
    lab('L_p2x')
    srd(12, 6, 0x10000000)
    if OPT['vtag']: e('s_load_dword s36, s[6:7], 0')
    e('s_waitcnt lgkmcnt(0)')
    e('s_add_u32 s36, s36, 0x11111111')
    lab('L_p2')
    srd(32, 30, 0x200000)
    p2_setup()
    p2_setup_b()
    e('v_and_b32 v12, 12, v4')
    e('v_bfe_u32 v13, v4, 1, 1')
    e('v_add_u32 v12, v12, v13')
    e('v_and_b32 v13, 1, v4')
    e('v_lshl_add_u32 v12, v13, 4, v12')
    e('v_lshrrev_b32 v12, v12, s36')
    e('v_lshlrev_b32 v13, 14, v12')
    e('v_bfi_b32 v113, 1, v12, v13')
    e('s_mov_b32 s39, 0')
    stamp()
    if OPT['wst']: e('s_waitcnt vmcnt(0)')
    if OPT['sleep']: e(f's_sleep {OPT["sleep"]}')
    stamp()
    lab('L_round')
    for i in range(4):
        e(f'buffer_load_dwordx4 v3, s[12:15], s19 offen offset:{1024*i} {OPT["zsc"]} lds')
    e('s_mov_b32 m0, s22')
    e('s_add_u32 s39, s39, 1')
    for i in range(4):
        e(f'buffer_load_dwordx4 v3, s[12:15], s21 offen offset:{1024*i} {OPT["zsc"]} lds')
    e('s_mov_b32 m0, s20')
    for p in range(4):
        e(f's_waitcnt vmcnt({6-2*p})')
        for hb in range(2):
            for half in range(2):
                r = 64 + 8*p + 4*hb + 2*half
                e(f'ds_read_b64_tr_b16 v[{r}:{r+1}], v6 offset:{p*2048 + half*1024 + hb*512}')
    for p in range(4):
        dh, b = p >> 1, p & 1
        for hb in range(2):
            e(f's_waitcnt lgkmcnt({14 - 4*p - 2*hb})')
            a = 96 + 4*(2*b + hb)
            d = 64 + 8*p + 4*hb
            cin = '0' if dh == 0 else f'v[{a}:{a+3}]'
            e(f'v_mfma_f32_16x16x32_bf16 v[{a}:{a+3}], v[{16+4*dh}:{19+4*dh}], v[{d}:{d+3}], {cin}')
            e(f'v_bitop3_b32 v114, v{d}, v{d+1}, v113 bitop3:0x7e')
            e(f'v_bitop3_b32 v115, v{d+2}, v{d+3}, v113 bitop3:0x7e')
            if p == 0 and hb == 0: e('v_or_b32 v112, v114, v115')
            else: e('v_or3_b32 v112, v112, v114, v115')
    e('v_and_b32 v112, s37, v112')
    e('v_cmp_ne_u32 vcc, 0, v112')
    e('s_cbranch_vccz L_go')
    if OPT['rsleep']: e(f's_sleep {OPT["rsleep"]}')
    e('s_cmp_lt_u32 s39, 100000')
    e('s_cbranch_scc1 L_round')
    lab('L_go')
    stamp()
    if OPT['cnt']:
        e('s_waitcnt lgkmcnt(0)')
        e('s_mul_i32 s39, s39, 100')
        e('s_add_u32 s66, s64, s39')
    p2_tail()
if __name__ == '__main__':
    parse(); gen(); finish(sys.argv[1], 116, 49152)
```

```python
import sys, re
def probe(src, dst, k, i, op, nw=1024):
    dif = op == 'dif'; j = k; k = 0
    if dif: op = 'avg'
    s = open(src).read()
    code = f'''
.globl fnet_q_kernel
.p2align 8
.type fnet_q_kernel,@function
fnet_q_kernel:
    s_cmp_ge_u32 s2, 1
    s_cbranch_scc1 q_end
    s_load_dwordx2 s[4:5], s[0:1], 56
    v_lshlrev_b32 v1, 6, v0
    v_mov_b32 v2, -1
    v_mov_b32 v3, {'-1' if op == 'min' else '0'}
    s_waitcnt lgkmcnt(0)
    s_mov_b32 s8, s4
    s_and_b32 s9, s5, 0xffff
    s_mov_b32 s10, 0x1000000
    s_mov_b32 s11, 0x20000
    s_mov_b32 s12, {(8<<20) + 4096}
    s_mov_b32 s13, {(8<<20) + k*2048*64 + 4*i + 4096}
    s_mov_b32 s14, 1
q_l1:
    buffer_load_dword v4, v1, s[8:11], s12 offen
    buffer_load_dword v5, v1, s[8:11], s13 offen
    buffer_load_dword v6, v1, s[8:11], s12 offen offset:{4*j}
    s_waitcnt vmcnt(0)
    v_min_u32 v2, v2, v4
    {'v_sub_u32 v5, v5, v6' if dif else 's_nop 0'}
    v_{'add' if op=='avg' else op}_u32 v3, v3, v5
    s_add_u32 s12, s12, 4096
    s_add_u32 s13, s13, 4096
    s_add_u32 s14, s14, 1
    s_cmp_lt_u32 s14, {nw//64}
    s_cbranch_scc1 q_l1
    s_mov_b32 s14, 0
    s_mov_b32 s15, -1
    s_mov_b32 s16, {'-1' if op == 'min' else '0'}
q_l2:
    v_readlane_b32 s17, v2, s14
    v_readlane_b32 s18, v3, s14
    s_min_u32 s15, s15, s17
    s_{'add' if op=='avg' else op}_u32 s16, s16, s18
    s_add_u32 s14, s14, 1
    s_cmp_lt_u32 s14, 64
    s_cbranch_scc1 q_l2
    s_mul_i32 s17, s15, {0 if dif else 960 if op=='avg' else 1}
    s_sub_u32 s16, s16, s17
    s_min_u32 s16, s16, {960*1000 if op=='avg' else 1000}
    s_mul_i32 s16, s16, {546 if op=='avg' else 8*65536}
    s_lshr_b32 s16, s16, 16
    s_add_u32 s16, s16, 4000
    s_mov_b32 s19, 0
q_l3:
    s_memrealtime s[20:21]
    s_waitcnt lgkmcnt(0)
    s_sub_u32 s20, s20, s15
    s_add_u32 s19, s19, 1
    s_cmp_gt_u32 s19, 20000
    s_cbranch_scc1 q_end
    s_cmp_lt_u32 s20, s16
    s_cbranch_scc1 q_l3
q_end:
    s_endpgm
'''
    d = '''.p2align 6
.amdhsa_kernel fnet_q_kernel
  .amdhsa_next_free_vgpr 8
  .amdhsa_next_free_sgpr 32
  .amdhsa_accum_offset 8
  .amdhsa_group_segment_fixed_size 0
  .amdhsa_kernarg_size 64
  .amdhsa_user_sgpr_count 2
  .amdhsa_user_sgpr_kernarg_segment_ptr 1
  .amdhsa_system_sgpr_workgroup_id_x 1
.end_amdhsa_kernel
'''
    s = s.replace('; @launch grid=', '; @launch kernel=standalone__spectral_fnet__prompt_kernel grid=')
    s = s.replace('.amdgcn_target', '; @launch kernel=fnet_q_kernel grid=(1,1,1) block=(64,1,1) lds=0\n.amdgcn_target')
    s = s.replace('.section .rodata,"a"', code + '.section .rodata,"a"') + d
    open(dst, 'w').write(s)
if __name__ == '__main__':
    src = sys.argv[1]
    for n, spec in enumerate(sys.argv[2:]):
        k, i, op = spec.split(',')[:3]
        nw = int(spec.split(',')[3]) if spec.count(',') > 2 else 1024
        probe(src, f'q{n}.s', int(k), int(i), op, nw)
```

```python
import sys, struct
HDR = open('standalone__spectral_fnet__prompt.s.ref').read().split('; Override launch')[0]
NAME = 'standalone__spectral_fnet__prompt_kernel'
OPT = dict(stamp=0, fstride=4, sleep=1, zsc='sc1', nowait=0)
L = []
def e(s): L.append('    ' + s)
def lab(s): L.append(s + ':')
def f32(x): return '0x%08x' % struct.unpack('<I', struct.pack('<f', x))[0]
NST = [0]
def stamp():
    if OPT['stamp']:
        i = NST[0]; NST[0] += 1
        e(f's_memrealtime s[{64+2*i}:{65+2*i}]')
def flush_stamps():
    if not OPT['stamp']: return
    e('s_waitcnt vmcnt(0)')
    stamp()
    e('s_waitcnt lgkmcnt(0)')
    e('v_mov_b32 v1, 0')
    for i in range(NST[0]):
        e(f'v_writelane_b32 v1, s{64+2*i}, {i}')
    e('s_lshl_b32 s59, s2, 2')
    e('s_add_u32 s59, s59, s16')
    e('s_lshl_b32 s59, s59, 6')
    e(f's_add_u32 s59, s59, {8<<20}')
    e('v_lshlrev_b32 v2, 2, v2')
    e('s_mov_b64 exec, 0xffff')
    e('buffer_store_dword v1, v2, s[12:15], s59 offen')
def srd(d, b, nbytes):
    e(f's_mov_b32 s{d}, s{b}')
    e(f's_and_b32 s{d+1}, s{b+1}, 0xffff')
    e(f's_mov_b32 s{d+2}, {nbytes}')
    e(f's_mov_b32 s{d+3}, 0x20000')
FLAG = 0x1000
ZOFF = 0x100000
XL = 40960
EX = 32768
FOLD = 0

def p1_tables():
    e('v_lshl_add_u32 v6, v4, 2, s16')
    e('v_cvt_f32_u32 v7, v6')
    e(f'v_mul_f32 v7, {f32(1/128)}, v7')
    e('v_cmp_eq_u32 vcc, 0, v6')
    e('v_lshlrev_b32 v8, 2, v5')
    e('v_cvt_f32_u32 v8, v8')
    e('v_cndmask_b32 v9, v7, 0.5, vcc')
    e(f'v_mov_b32 v11, {f32(0.25)}')
    e('v_cndmask_b32 v10, 0, v11, vcc')
    for j in range(8):
        so = 16*(j >> 2) + (j & 3)
        if so == 0: src = 'v8'
        else:
            e(f'v_add_f32 v11, {f32(so)}, v8'); src = 'v11'
        e(f'v_mul_f32 v12, v7, {src}')
        e(f'v_fma_f32 v13, v9, {src}, v10')
        e(f'v_cos_f32 v{48+(j&1)}, v12')
        e(f'v_sin_f32 v{50+(j&1)}, v13')
        if j & 1:
            e(f'v_cvt_pk_bf16_f32 v{16+j//2}, v48, v49')
            e(f'v_cvt_pk_bf16_f32 v{20+j//2}, v50, v51')
    e('s_mov_b32 s22, 0x80008000')
    e('s_bitcmp1_b32 s16, 0')
    e('s_cselect_b32 s23, s22, 0')
    e('s_cselect_b64 vcc, -1, 0')
    e('s_bitcmp1_b32 s16, 1')
    e('s_cselect_b32 s24, s22, 0')
    e('s_xor_b32 s25, s23, s24')
    for i in range(4):
        e(f'v_cndmask_b32 v{24+i}, v{16+i}, v{20+i}, vcc')
        e(f'v_cndmask_b32 v{28+i}, v{20+i}, v{16+i}, vcc')
    for i in range(4):
        e(f'v_xor_b32 v{24+i}, s25, v{24+i}')
        e(f'v_xor_b32 v{28+i}, s24, v{28+i}')
    for i in range(16):
        e(f'v_xor_b32 v{32+i}, s23, v{16+i}')

def p2_setup():
    e('s_and_b32 s17, s2, 7')
    e('s_bfe_u32 s18, s2, 0x30005')
    e('s_lshl_b32 s18, s18, 3')
    e('s_or_b32 s17, s17, s18')
    e('s_bfe_u32 s18, s2, 0x20003')
    e(f's_lshl_b32 s19, s17, {15-FOLD}')
    e(f's_lshl_b32 s20, s16, {13-FOLD}')
    e('s_add_u32 s19, s19, s20')
    e(f's_add_u32 s19, s19, {ZOFF - 1024*FOLD}')
    e('s_mov_b32 m0, s20')
    if not FOLD:
        e('s_add_u32 s21, s19, 4096')
        e('s_add_u32 s22, s20, 4096')
    e('v_bfe_u32 v3, v2, 2, 3')
    e('v_lshlrev_b32 v3, 7, v3')
    e('v_lshrrev_b32 v6, 5, v2')
    e('v_lshl_add_u32 v3, v6, 6, v3')
    e('v_and_b32 v6, 3, v2')
    e('v_lshl_add_u32 v3, v6, 4, v3')
    if FOLD:
        e('s_lshr_b32 s21, s17, 2')
        e('s_lshl_b32 s21, s21, 7')
        e('v_xor_b32 v3, s21, v3')
        e('v_xor_b32 v1, 0x400, v3')
        e('v_add_u32 v3, 0x400, v3')
        e('s_lshl_b32 s21, s17, 7')
        e(f's_add_u32 s21, s21, {ZOFF + (1<<20)}')
        e('v_lshlrev_b32 v92, 4, v5')
        if not OPT.get('tail'):
            e('s_cmp_eq_u32 s16, 0')
            e('s_cselect_b32 s46, s37, 0')
            e('s_mov_b32 s47, s46')
    e('s_lshl_b32 s23, s18, 9')
    e('s_add_u32 s23, s23, s17')
    e('s_and_b32 s24, s18, 1')
    e('s_lshl_b32 s24, s24, 9')
    e('s_lshr_b32 s25, s18, 1')
    e('s_lshl_b32 s26, s25, 6')
    e('s_add_u32 s24, s24, s26')
    e('s_lshr_b32 s26, s2, 8')
    e('s_lshl_b32 s26, s26, 10')
    e('s_add_u32 s24, s24, s26')
    e('s_lshl_b32 s25, s25, 4')
    e('s_cmp_eq_u32 s17, 0')
    e('s_cselect_b32 s23, s24, s23')
    e('s_cselect_b32 s24, 0xffff, -1')
    e('s_cselect_b32 s25, s25, 0')
    e('v_lshrrev_b32 v6, 2, v4')
    e('v_lshl_add_u32 v6, v6, 7, s23')
    e('v_cvt_f32_u32 v6, v6')
    e(f'v_mul_f32 v6, {f32(1/2048)}, v6')
    e('v_and_b32 v7, 1, v2')
    e('v_cvt_f32_u32 v7, v7')
    e(f'v_mul_f32 v7, {f32(-0.25)}, v7')
    e('v_cvt_f32_u32 v8, v5')
    e('v_add_f32 v9, v8, v8')
    if not OPT.get('tail'):
        e('v_lshlrev_b32 v10, 30, v2')
        e('v_and_b32 v10, 0x80000000, v10')
        e('v_lshrrev_b32 v11, 16, v10')
        e('v_or_b32 v10, v10, v11')
    for jj in range(4):
        so = 8*(jj >> 1) + (jj & 1)
        if so == 0: src = 'v9'
        else:
            e(f'v_add_f32 v11, {f32(so)}, v9'); src = 'v11'
        e(f'v_fma_f32 v12, v6, {src}, v7')
        e('v_cos_f32 v13, v12')
        e('v_sin_f32 v14, -v12')
        e('s_nop 0')
        e(f'v_cvt_pk_bf16_f32 v{16+jj}, v13, v14')
        e(f'v_and_b32 v{16+jj}, s24, v{16+jj}')
        e(f'v_lshlrev_b32 v{16+jj}, s25, v{16+jj}')
        if not OPT.get('tail'): e(f'v_xor_b32 v{20+jj}, v10, v{16+jj}')
def p2_setup_b():
    e('v_cvt_f32_u32 v6, v4')
    e('v_mul_f32 v9, 4.0, v8')
    e(f'v_mul_f32 v7, {f32(1/16)}, v6')
    e(f'v_add_f32 v15, {f32(1/32)}, v7')
    for r in range(4):
        if r == 0: src = 'v9'
        else:
            e(f'v_add_f32 v11, {f32(r)}, v9'); src = 'v11'
        for e0 in range(2):
            e(f'v_mul_f32 v12, v{7 if e0 == 0 else 15}, {src}')
            e('v_cos_f32 v13, v12')
            e('v_sin_f32 v14, v12')
            e(f'v_mul_f32 v12, {f32(1/16)}, v12')
            e(f'v_cvt_pk_bf16_f32 v{24+8*e0+r}, v13, -v14')
            e(f'v_cvt_pk_bf16_f32 v{28+8*e0+r}, v14, v13')
            e(f'v_cos_f32 v{40+8*e0+r}, v12')
            e(f'v_sin_f32 v{44+8*e0+r}, v12')
    e('v_lshrrev_b32 v6, 3, v2')
    e('v_lshlrev_b32 v6, 6, v6')
    e('v_and_b32 v7, 3, v2')
    e('v_lshl_add_u32 v6, v7, 4, v6')
    e('v_and_b32 v7, 4, v2')
    e('v_lshl_add_u32 v6, v7, 1, v6')
    e('v_add_u32 v6, s20, v6')
    e('v_lshlrev_b32 v7, 11, v5')
    e('v_lshl_add_u32 v7, v4, 4, v7')
    e('s_lshl_b32 s26, s16, 8')
    e('v_add_u32 v7, s26, v7')
    e('s_lshl_b32 s26, s16, 11')
    e('v_lshl_add_u32 v8, v2, 4, s26')
    e('v_lshl_add_u32 v9, v4, 2, v5')
    e('v_add_u32 v11, 1, v9')
    e('v_lshlrev_b32 v9, 4, v9')
    e('v_sub_u32 v10, 1008, v9')
    e('v_and_b32 v12, 3, v11')
    e('v_and_b32 v11, 60, v11')
    e('v_lshl_add_u32 v11, v12, 6, v11')
    e('s_lshl_b32 s26, s16, 7')
    e('s_add_u32 s26, s26, s23')
    e('s_sub_u32 s27, 2048, s26')
    e('s_lshl_b32 s27, s27, 10')
    e('s_and_b32 s29, s26, 1023')
    e('s_cmp_eq_u32 s2, 256')
    e('s_cselect_b32 s28, s16, 0')
    e('s_lshl_b32 s26, s26, 10')

def p2_tail():
    for dl in range(4):
        if dl >= 2: e('s_nop 0')
        for e0 in range(2):
            e(f'v_cvt_pk_bf16_f32 v{64+4*e0+dl}, v{96+4*dl+2*e0}, v{96+4*dl+2*e0+1}')
    e(f'ds_write_b128 v7, v[64:67] offset:{EX}')
    e(f'ds_write_b128 v7, v[68:71] offset:{EX+1024}')
    e('s_waitcnt lgkmcnt(0)')
    e('s_barrier')
    stamp()
    e('s_cmp_lg_u32 s28, 0')
    e('s_cbranch_scc1 L_extra')
    e(f'ds_read_b128 v[72:75], v8 offset:{EX}')
    e(f'ds_read_b128 v[76:79], v8 offset:{EX+1024}')
    for e0 in range(2):
        e(f's_waitcnt lgkmcnt({1-e0})')
        for c in range(2):
            a = 80 + 8*e0 + 4*c
            e(f'v_mfma_f32_16x16x32_bf16 v[{a}:{a+3}], v[{72+4*e0}:{75+4*e0}], v[{24+8*e0+4*c}:{27+8*e0+4*c}], 0')
    e('s_nop 4')
    for e0 in range(2):
        R, I = 80 + 8*e0, 84 + 8*e0
        C, Sn = 40 + 8*e0, 44 + 8*e0
        for r in range(4):
            e(f'v_mul_f32 v{96+r}, v{R+r}, v{C+r}')
            e(f'v_mul_f32 v{100+r}, v{R+r}, v{Sn+r}')
        for r in range(4):
            e(f'v_fma_f32 v{96+r}, -v{I+r}, v{Sn+r}, v{96+r}')
            e(f'v_fmac_f32 v{100+r}, v{I+r}, v{C+r}')
        for r in range(4):
            e(f'v_cvt_pk_bf16_f32 v{64+4*e0+r}, v{96+r}, v{100+r}')
        e('s_nop 1')
        e(f'v_mfma_f32_16x16x32_bf16 v[{104+4*e0}:{107+4*e0}], v[{64+4*e0}:{67+4*e0}], v[24:27], 0')
    e('ds_bpermute_b32 v72, v11, v104')
    e('s_waitcnt vmcnt(0)')
    e('s_nop 5')
    for r in range(4):
        e(f'v_cvt_pk_bf16_f32 v{64+r}, v{104+r}, v{108+r}')
    e('buffer_store_dwordx4 v[64:67], v9, s[32:35], s26 offen')
    e('s_cmp_eq_u32 s29, 0')
    e('s_cbranch_scc1 L_end')
    for r in range(1, 4):
        e(f'v_cvt_pk_bf16_f32 v{68+r}, v{104+4-r}, v{108+3-r}')
    e('s_waitcnt lgkmcnt(0)')
    e('v_cvt_pk_bf16_f32 v68, v72, v111')
    e('buffer_store_dwordx4 v[68:71], v10, s[32:35], s27 offen')
    stamp()
    flush_stamps()
    e('s_endpgm')
    lab('L_extra')
    e('s_waitcnt vmcnt(0)')
    e('v_mov_b32 v1, s36')
    e('v_mov_b32 v2, 0')
    e('s_mov_b64 exec, 1')
    e('buffer_store_dword v1, v2, s[12:15], 0 offen')
    lab('L_end')
    e('s_endpgm')

def gen():
    fs = OPT['fstride']; fsh = fs.bit_length() - 1
    L.append(f'.globl {NAME}\n.p2align 8\n.type {NAME},@function\n{NAME}:')
    e('s_cmp_gt_u32 s2, 256')
    e('s_cbranch_scc1 L_end')
    stamp()
    e('s_load_dwordx2 s[4:5], s[0:1], 0')
    e('s_load_dwordx2 s[6:7], s[0:1], 56')
    e('s_load_dwordx2 s[30:31], s[0:1], 40')
    e('v_lshrrev_b32 v1, 6, v0')
    e('v_and_b32 v2, 63, v0')
    e('v_readfirstlane_b32 s16, v1')
    e('s_and_b32 s17, s2, 7')
    e('s_lshl_b32 s17, s17, 1')
    e('s_bfe_u32 s18, s2, 0x10003')
    e('s_or_b32 s17, s17, s18')
    e('s_lshr_b32 s18, s2, 4')
    e('v_lshrrev_b32 v3, 2, v0')
    e('v_lshrrev_b32 v4, 3, v0')
    e('v_and_b32 v4, 2, v4')
    e('v_xor_b32 v4, v4, v0')
    e('v_and_b32 v4, 3, v4')
    e('v_lshlrev_b32 v3, 14, v3')
    e('v_lshl_add_u32 v3, v4, 4, v3')
    e('s_lshl_b32 s19, s18, 10')
    e('s_lshl_b32 s20, s17, 6')
    e('s_add_u32 s19, s19, s20')
    e('s_add_u32 s20, s19, 0x100000')
    e('s_lshl_b32 s21, s16, 10')
    e(f's_add_u32 s21, s21, {XL}')
    e('s_mov_b32 m0, s21')
    e('s_add_u32 s21, s21, 4096')
    e('v_and_b32 v4, 15, v2')
    e('v_lshrrev_b32 v5, 4, v2')
    e('s_waitcnt lgkmcnt(0)')
    e('s_load_dword s36, s[6:7], 0')
    srd(8, 4, 0x200000)
    srd(12, 6, 0x1000000)
    srd(32, 30, 0x200000)
    e('s_cmp_eq_u32 s2, 256')
    e('s_cbranch_scc1 L_p2x')
    e('buffer_load_dwordx4 v3, s[8:11], s19 offen lds')
    e('s_mov_b32 m0, s21')
    e('s_nop 0')
    e('buffer_load_dwordx4 v3, s[8:11], s20 offen lds')
    stamp()
    p1_tables()
    e('v_lshrrev_b32 v8, 2, v2')
    e('v_lshlrev_b32 v8, 6, v8')
    e('v_and_b32 v9, 3, v2')
    e('v_lshl_add_u32 v8, v9, 3, v8')
    e('v_and_b32 v9, 1, v5')
    e('v_lshl_add_u32 v8, v9, 5, v8')
    e('v_xor_b32 v9, 32, v8')
    e('v_lshlrev_b32 v10, 15, v6')
    e('v_lshl_add_u32 v10, v5, 4, v10')
    e('s_bfe_u32 s26, s17, 0x20001')
    e('s_lshl_b32 s26, s26, 6')
    e('s_lshr_b32 s27, s17, 3')
    e('s_lshl_b32 s27, s27, 5')
    e('s_add_u32 s26, s26, s27')
    e('s_and_b32 s27, s17, 1')
    e('s_lshl_b32 s27, s27, 4')
    e('s_add_u32 s26, s26, s27')
    e('s_add_u32 s26, s26, s18')
    e('s_lshl_b32 s27, s16, 8')
    e('s_add_u32 s37, s26, s27')
    e(f's_lshl_b32 s37, s37, {fsh}')
    e(f's_add_u32 s37, s37, {FLAG}')
    e('s_lshl_b32 s26, s26, 7')
    e(f's_add_u32 s26, s26, {ZOFF}')
    stamp()
    e('s_waitcnt vmcnt(0) lgkmcnt(0)')
    stamp()
    e('s_barrier')
    for kk in range(4):
        for h in range(2):
            for half in range(2):
                r = 64 + 8*kk + 4*h + 2*half
                e(f'ds_read_b64_tr_b16 v[{r}:{r+1}], v{8+h} offset:{XL + (32*kk+16*half)*64}')
    for kk in range(4):
        for h in range(2):
            e(f's_waitcnt lgkmcnt({14 - 4*kk - 2*h})')
            for c in range(2):
                a = 48 + 8*h + 4*c
                d = 64 + 8*kk + 4*h
                t = 16 + 8*kk + 4*c
                cin = '0' if kk == 0 else f'v[{a}:{a+3}]'
                e(f'v_mfma_f32_16x16x32_bf16 v[{a}:{a+3}], v[{d}:{d+3}], v[{t}:{t+3}], {cin}')
    e('s_add_u32 s36, s36, 1')
    e('v_mov_b32 v1, s36')
    e('v_mov_b32 v112, 0')
    e('s_nop 2')
    for h in range(2):
        if h == 1: e('s_nop 1')
        for i in range(4):
            e(f'v_cvt_pk_bf16_f32 v{96+4*h+i}, v{48+8*h+2*i}, v{48+8*h+2*i+1}')
        e(f'buffer_store_dwordx4 v[{96+4*h}:{99+4*h}], v10, s[12:15], s26 offen offset:{64*h} sc1')
    stamp()
    if not OPT['nowait']:
        p2_setup()
        e('s_waitcnt vmcnt(0)')
    stamp()
    e('s_mov_b64 exec, 1')
    e('buffer_store_dword v1, v112, s[12:15], s37 offen sc1')
    e('s_mov_b64 exec, -1')
    if OPT['nowait']: p2_setup()
    e('s_branch L_p2')
    lab('L_p2x')
    e('s_waitcnt lgkmcnt(0)')
    e('s_add_u32 s36, s36, 1')
    p2_setup()
    lab('L_p2')
    p2_setup_b()
    e('s_and_b32 s38, s17, 3')
    e('s_lshl_b32 s38, s38, 2')
    e('s_add_u32 s38, s38, s16')
    e(f's_lshl_b32 s38, s38, {6+fsh}')
    e(f's_add_u32 s38, s38, {FLAG}')
    e(f'v_lshlrev_b32 v12, {fsh}, v2')
    e('s_mov_b32 s39, 0')
    stamp()
    lab('L_poll')
    e('buffer_load_dword v13, v12, s[12:15], s38 offen sc1')
    e('s_add_u32 s39, s39, 1')
    e('s_cmp_gt_u32 s39, 100000')
    e('s_cbranch_scc1 L_go')
    e('s_waitcnt vmcnt(0)')
    e('v_cmp_ne_u32 vcc, s36, v13')
    e('s_cbranch_vccz L_go')
    if OPT['sleep']: e(f's_sleep {OPT["sleep"]}')
    e('s_branch L_poll')
    lab('L_go')
    stamp()
    for i in range(4):
        e(f'buffer_load_dwordx4 v3, s[12:15], s19 offen offset:{1024*i} {OPT["zsc"]} lds')
    e('s_mov_b32 m0, s22')
    e('s_nop 0')
    for i in range(4):
        e(f'buffer_load_dwordx4 v3, s[12:15], s21 offen offset:{1024*i} {OPT["zsc"]} lds')
    for p in range(4):
        e(f's_waitcnt vmcnt({6-2*p})')
        for hb in range(2):
            for half in range(2):
                r = 64 + 8*p + 4*hb + 2*half
                e(f'ds_read_b64_tr_b16 v[{r}:{r+1}], v6 offset:{p*2048 + half*1024 + hb*512}')
    stamp()
    for p in range(4):
        dh, b = p >> 1, p & 1
        for hb in range(2):
            e(f's_waitcnt lgkmcnt({14 - 4*p - 2*hb})')
            a = 96 + 4*(2*b + hb)
            d = 64 + 8*p + 4*hb
            cin = '0' if dh == 0 else f'v[{a}:{a+3}]'
            e(f'v_mfma_f32_16x16x32_bf16 v[{a}:{a+3}], v[{16+4*dh}:{19+4*dh}], v[{d}:{d+3}], {cin}')
    e('s_nop 4')
    p2_tail()

def finish(path, vgpr, lds, nwg=257, blk=256):
    out = HDR + f'; @launch grid=({nwg},1,1) block=({blk},1,1) lds={lds}\n'
    out += '.amdgcn_target "amdgcn-amd-amdhsa--gfx950"\n.text\n' + '\n'.join(L) + '\n'
    out += f'''.section .rodata,"a"
.p2align 6
.amdhsa_kernel {NAME}
  .amdhsa_next_free_vgpr {vgpr}
  .amdhsa_next_free_sgpr {100 if OPT['stamp'] else 64}
  .amdhsa_accum_offset {(vgpr+3)//4*4}
  .amdhsa_group_segment_fixed_size 0
  .amdhsa_kernarg_size 64
  .amdhsa_user_sgpr_count 2
  .amdhsa_user_sgpr_kernarg_segment_ptr 1
  .amdhsa_system_sgpr_workgroup_id_x 1
.end_amdhsa_kernel
'''
    open(path, 'w').write(out)
def parse():
    for a in sys.argv[2:]:
        k, v = a.split('=')
        OPT[k] = int(v) if v.lstrip('-').isdigit() else v
if __name__ == '__main__':
    parse(); gen(); finish(sys.argv[1], 116, 49152)
```

```python
import gen2
gen2.FOLD = 1; gen2.EX = 16384; gen2.XL = 24576; gen2.ZOFF = 2 << 20
from gen2 import *
OPT.update(map=2, una=0, ld4=1, ka=0, tail=1, r2=1, t1pre=0, t2pre=0, pipe=0, split=0, xsc='', pf=1, sleep=0, rsleep=0, stsc='sc1', cnt=0, wst=1, osc='')
EL = XL + 4096
import re
def remap(i0):
    def vm(n): return n + 116 if (n in (1, 3) or 6 <= n <= 55) else n
    def sm(n): return n + 31 if 17 <= n <= 29 else n
    for i in range(i0, len(L)):
        t = L[i]
        t = re.sub(r'\bv(\d+)\b', lambda m: 'v%d' % vm(int(m.group(1))), t)
        t = re.sub(r'\bv\[(\d+):(\d+)\]', lambda m: 'v[%d:%d]' % (vm(int(m.group(1))), vm(int(m.group(2)))), t)
        t = re.sub(r'\bs(\d+)\b', lambda m: 's%d' % sm(int(m.group(1))), t)
        L[i] = t
def mapped(f):
    i0 = len(L); f(); remap(i0)
def lean_tables():
    e('v_lshl_add_u32 v6, v4, 2, s16')
    e('v_cvt_f32_u32 v7, v6')
    e('v_cvt_f32_u32 v8, v5')
    e(f'v_mul_f32 v7, {f32(1/128)}, v7')
    e('v_mul_f32 v8, 4.0, v8')
    e('v_mul_f32 v12, v7, v8')
    e(f'v_mul_f32 v8, {f32(13)}, v7')
    e('v_cmp_eq_u32 vcc, 0, v6')
    e('v_mov_b32 v9, 0xbf803f80')
    for j in range(8):
        e(f'v_cos_f32 v{48+(j&1)}, v12')
        e(f'v_sin_f32 v{50+(j&1)}, v12')
        if j < 7: e(f'v_add_f32 v12, v12, v{8 if j == 3 else 7}')
        else: e('s_mov_b32 s22, 0x80008000')
        if j & 1:
            e(f'v_cvt_pk_bf16_f32 v{16+j//2}, v48, v49')
            e(f'v_cvt_pk_bf16_f32 v{20+j//2}, v50, v51')
            e(f'v_cndmask_b32 v{20+j//2}, v{20+j//2}, v9, vcc')
    e('s_bitcmp1_b32 s16, 1')
    e('s_cselect_b32 s24, s22, 0')
    e('s_bitcmp1_b32 s16, 0')
    e('s_cbranch_scc1 L_odd')
    for i in range(8):
        e(f'v_xor_b32 v{24+i}, s24, v{16+i}')
    e('s_mov_b32 s23, 0')
    e('s_branch L_tab')
    lab('L_odd')
    e('s_xor_b32 s25, s22, s24')
    e('s_mov_b32 s23, s22')
    for i in range(4):
        e(f'v_xor_b32 v{28+i}, s24, v{16+i}')
    for i in range(4):
        e(f'v_xor_b32 v{24+i}, s25, v{20+i}')
    lab('L_tab')
def tail2():
    for dl in range(4):
        e(f'v_cvt_pk_bf16_f32 v{64+dl}, v{96+4*dl}, v{96+4*dl+1}')
    e(f'ds_write_b128 v7, v[64:67] offset:{EX}')
    e('v_readlane_b32 s46, v84, s47')
    e('s_waitcnt lgkmcnt(0)')
    e('s_barrier')
    stamp()
    e('s_cmp_lg_u32 s28, 0')
    e('s_cbranch_scc1 L_extra')
    e(f'ds_read_b128 v[72:75], v8 offset:{EX}')
    for r in range(4): e(f'v_mov_b32 v{104+r}, s46')
    for r in range(4): e(f'v_sub_f32 v{108+r}, 0, v104')
    e('s_waitcnt lgkmcnt(0)')
    for e0 in range(2):
        for c in range(2):
            a = 80 + 8*e0 + 4*c
            e(f'v_mfma_f32_16x16x32_bf16 v[{a}:{a+3}], v[72:75], v[{24+8*e0+4*c}:{27+8*e0+4*c}], 0')
    e('s_nop 4')
    def p(r): return f'v[{r}:{r+1}]'
    for e0 in range(2):
        R, I = 80 + 8*e0, 84 + 8*e0
        C, Sn = 40 + 8*e0, 44 + 8*e0
        for r in (0, 2):
            e(f'v_pk_mul_f32 {p(96+r)}, {p(R+r)}, {p(C+r)}')
            e(f'v_pk_mul_f32 {p(100+r)}, {p(R+r)}, {p(Sn+r)}')
        for r in (0, 2):
            e(f'v_pk_fma_f32 {p(96+r)}, {p(I+r)}, {p(Sn+r)}, {p(96+r)} neg_lo:[1,0,0] neg_hi:[1,0,0]')
            e(f'v_pk_fma_f32 {p(100+r)}, {p(I+r)}, {p(C+r)}, {p(100+r)}')
        if e0: e('ds_bpermute_b32 v72, v11, v104')
        for r in range(4):
            e(f'v_cvt_pk_bf16_f32 v{64+4*e0+r}, v{96+r}, v{100+r}')
        e('s_nop 1')
        e(f'v_mfma_f32_16x16x32_bf16 v[{104+4*e0}:{107+4*e0}], v[{64+4*e0}:{67+4*e0}], v[24:27], v[{104+4*e0}:{107+4*e0}]')
    e('s_cmp_eq_u32 s29, 0')
    e('s_waitcnt vmcnt(0) lgkmcnt(0)')
    e('s_nop 5')
    for r in range(4):
        e(f'v_cvt_pk_bf16_f32 v{64+r}, v{104+r}, v{108+r}')
    e(f'buffer_store_dwordx4 v[64:67], v9, s[32:35], s26 offen {OPT["osc"]}')
    e('s_cbranch_scc1 L_end')
    for r in range(1, 4):
        e(f'v_cvt_pk_bf16_f32 v{68+r}, v{104+4-r}, v{108+3-r}')
    e('v_cvt_pk_bf16_f32 v68, v72, v111')
    e(f'buffer_store_dwordx4 v[68:71], v10, s[32:35], s27 offen {OPT["osc"]}')
    stamp()
    flush_stamps()
    e('s_endpgm')
    lab('L_extra')
    e('s_waitcnt vmcnt(0)')
    e('v_mov_b32 v1, s36')
    e('s_mov_b64 exec, 1')
    e('buffer_store_dword v1, off, s[12:15], 0')
    lab('L_end')
    e('s_endpgm')
def gen():
    L.append(f'.globl {NAME}\n.p2align 8\n.type {NAME},@function\n{NAME}:')
    e('s_cmp_gt_u32 s2, 256')
    e('s_cbranch_scc1 L_end')
    stamp()
    e('s_load_dwordx2 s[8:9], s[0:1], 0')
    def ka2():
        e('s_load_dwordx2 s[12:13], s[0:1], 56')
        e('s_load_dwordx2 s[32:33], s[0:1], 40')
    if not OPT['ka']: ka2()
    if OPT['pf']:
        e('s_getpc_b64 s[40:41]')
        lab('L_pc')
        e(f'v_min_u32 v1, (L_end-L_pc)/64, v0')
        e('v_lshlrev_b32 v1, 6, v1')
        e('global_load_dword v115, v1, s[40:41]')
    if OPT['map'] < 2: e('s_and_b32 s17, s2, 7')
    if OPT['map'] == 0:
        e('s_sub_u32 s18, 16, s17')
        e('s_cmp_eq_u32 s17, 0')
        e('s_cselect_b32 s18, 8, s18')
        e('s_bitcmp1_b32 s2, 3')
        e('s_cselect_b32 s18, s18, s17')
    elif OPT['map'] == 1:
        e('s_bitcmp1_b32 s2, 3')
        e('s_addc_u32 s18, s17, s17')
    else: e('s_and_b32 s18, s2, 15')
    e('s_lshr_b32 s17, s2, 4')
    if not OPT['ld4']:
        e('v_lshrrev_b32 v3, 1, v0')
        e('v_lshl_add_u32 v6, v3, 4, s18')
        e('v_and_b32 v7, 1, v0')
        e('v_lshl_add_u32 v7, s17, 1, v7')
        e('v_lshlrev_b32 v8, 4, v7')
        e('v_lshl_add_u32 v73, v6, 10, v8')
        e('v_sub_u32 v6, 0x800, v6')
        e('v_and_b32 v6, 0x7ff, v6')
        e('v_sub_u32 v8, 1008, v8')
        e('v_lshl_add_u32 v74, v6, 10, v8')
        e('v_cmp_eq_u32 s[30:31], 0, v7')
        if OPT['una']: e('v_cmp_ne_u32 vcc, 31, v7')
        else: e('v_cmp_eq_u32 vcc, 0, v7')
        e('v_bfrev_b32 v11, 2')
        e('v_cndmask_b32 v75, v74, v11, vcc')
    else:
        e('v_lshrrev_b32 v3, 2, v0')
        e('v_lshl_add_u32 v6, v3, 4, s18')
        e('v_and_b32 v7, 3, v0')
        e('v_lshl_add_u32 v7, s17, 2, v7')
        e('v_lshlrev_b32 v8, 3, v7')
        e('v_lshl_add_u32 v92, v6, 10, v8')
        e('v_max_u32 v8, 4, v8')
        e('v_sub_u32 v6, 0x800, v6')
        e('v_and_b32 v6, 0x7ff, v6')
        e('v_sub_u32 v8, 1016, v8')
        e('v_lshl_add_u32 v93, v6, 10, v8')
        e('v_xor_b32 v94, 0x100000, v93')
        e('v_cmp_eq_u32 s[30:31], 0, v7')
        e('s_mov_b32 s19, 0x100000')
    e(f's_mov_b32 s10, {0x200000 + 4*OPT["una"]}')
    e('s_mov_b32 s11, 0x20000')
    i0 = len(L); (lean_tables if OPT['r2'] else p1_tables)(); T1 = L[i0:]; del L[i0:]
    L.extend(T1[:OPT['t1pre']])
    e('s_waitcnt lgkmcnt(0)')
    if not OPT['ld4']:
        e(f'buffer_load_dwordx4 v[64:67], v73, s[8:11], 0 offen {OPT["xsc"]}')
        e(f'buffer_load_dwordx4 v[68:71], v74, s[8:11], 0 offen offset:{2 if OPT["una"] else 0} {OPT["xsc"]}')
        e(f'buffer_load_dword v72, v75, s[8:11], 0 offen offset:{0 if OPT["una"] else 16} {OPT["xsc"]}')
    else:
        e('buffer_load_dwordx2 v[64:65], v92, s[8:11], 0 offen')
        e('buffer_load_dwordx3 v[68:70], v93, s[8:11], 0 offen')
        e('buffer_load_dwordx2 v[66:67], v92, s[8:11], s19 offen')
        e('buffer_load_dwordx3 v[72:74], v94, s[8:11], 0 offen')
    if OPT['ka']:
        ka2()
        L.extend(T1[OPT['t1pre']:OPT['t1pre']+30]); del T1[OPT['t1pre']:OPT['t1pre']+30]
        e('s_waitcnt lgkmcnt(0)')
    e('s_mov_b32 s14, 0x1000000')
    e('s_mov_b32 s15, 0x20000')
    e('v_lshrrev_b32 v1, 6, v0')
    e('v_and_b32 v2, 63, v0')
    e('v_readfirstlane_b32 s16, v1')
    e('v_and_b32 v4, 15, v2')
    e('v_lshrrev_b32 v5, 4, v2')
    e('s_mov_b32 s37, 0x00010001')
    e('buffer_load_dword v15, off, s[12:15], 0')
    stamp()
    L.extend(T1[OPT['t1pre']:])
    e('v_lshlrev_b32 v8, 3, v2')
    if OPT['r2']:
        e('v_and_b32 v9, 64, v0')
        e('v_lshl_add_u32 v8, v9, 5, v8')
    e(f'v_lshlrev_b32 v9, {3 if OPT["ld4"] else 4}, v0')
    e('v_and_b32 v7, 0x63, v3')
    e('v_bfe_u32 v11, v3, 2, 2')
    e('v_lshl_add_u32 v7, v11, 3, v7')
    e('v_bfe_u32 v11, v3, 4, 1')
    e('v_lshl_add_u32 v7, v11, 2, v7')
    e(f'v_and_b32 v11, {3 if OPT["ld4"] else 1}, v0')
    e('v_lshl_add_u32 v7, v11, 7, v7')
    e('v_lshlrev_b32 v7, 1, v7')
    e('v_and_b32 v3, 3, v4')
    e('v_lshlrev_b32 v3, 6, v3')
    e('v_lshl_add_u32 v3, v5, 4, v3')
    e('v_xor_b32 v10, s18, v4')
    e('v_lshlrev_b32 v10, 7, v10')
    e('v_lshl_add_u32 v10, v6, 14, v10')
    e('v_lshl_add_u32 v10, v5, 4, v10')
    e('v_lshlrev_b32 v1, 7, v6')
    e('s_lshr_b32 s26, s17, 1')
    e('s_lshl_b32 s26, s26, 11')
    e('s_and_b32 s27, s17, 1')
    e('s_lshl_b32 s27, s27, 6')
    e('s_add_u32 s26, s26, s27')
    e(f's_add_u32 s26, s26, {ZOFF}')
    e('s_lshl_b32 s27, s18, 3')
    e(f's_add_u32 s27, s27, {ZOFF + (1<<20)}')
    e('s_and_b32 s44, s23, 0x80000000')
    e('s_or_b32 s44, s44, 1.0')
    e('s_and_b32 s45, s24, 0x80000000')
    e('s_or_b32 s45, s45, 1.0')
    e('s_bitcmp1_b32 s16, 0')
    e('s_cselect_b32 s42, 0, s45')
    e('s_cselect_b32 s43, s45, 0')
    e('s_mov_b32 s38, 0xffff0000')
    e('v_lshlrev_b32 v11, 2, v5')
    if OPT['t2pre']: mapped(p2_setup)
    e('s_cmp_eq_u32 s2, 256')
    e('s_cbranch_scc1 L_p2x')
    stamp()
    if not OPT['ld4']:
        e('s_waitcnt vmcnt(3)')
        for i in range(4):
            e(f'v_lshlrev_b32 v{76+2*i}, 16, v{64+i}')
            e(f'v_and_b32 v{77+2*i}, s38, v{64+i}')
        e('s_waitcnt vmcnt(2)')
        if OPT['una']:
            for i in (0, 1, 2, 3):
                e(f'v_and_b32 v{84+2*i}, s38, v{68+3-i}')
                e(f'v_lshlrev_b32 v{85+2*i}, 16, v{68+3-i}')
            e('v_cndmask_b32 v84, v84, 0, s[30:31]')
        else: e(f'ds_write_b16 v7, v68 offset:{EL}')
        for i in (3, 2, 1, 0) if not OPT['una'] else ():
            e(f'v_and_b32 v{85+2*i}, s38, v{68+3-i}')
            if i == 0: e('s_waitcnt vmcnt(1)')
            e(f'v_lshlrev_b32 v{84+2*i}, 16, v{68+4-i}')
        for i in (3, 2, 1, 0):
            e(f'v_pk_add_f32 v[{76+2*i}:{77+2*i}], v[{76+2*i}:{77+2*i}], v[{84+2*i}:{85+2*i}]')
        for i in (3, 2, 1, 0):
            e(f'v_cvt_pk_bf16_f32 v{64+i}, v{76+2*i}, v{77+2*i}')
        e(f'ds_write_b128 v9, v[64:67] offset:{XL}')
        if OPT['una']:
            e('s_waitcnt vmcnt(1)')
            e(f'ds_write_b16 v7, v72 offset:{EL}')
    else:
        e('s_cmp_eq_u32 s17, 0')
        for p in range(2):
            a, b, A, B = 64+2*p, 68+4*p, 76+4*p, 84+4*p
            e(f's_waitcnt vmcnt({4-2*p})')
            for i in range(2):
                e(f'v_lshlrev_b32 v{A+2*i}, 16, v{a+i}')
                e(f'v_and_b32 v{A+1+2*i}, s38, v{a+i}')
            e(f's_waitcnt vmcnt({3-2*p})')
            e(f's_cbranch_scc0 L_nofix{p}')
            e(f'v_cndmask_b32 v{b}, v{b}, v{b+1}, s[30:31]')
            e(f'v_cndmask_b32 v{b+1}, v{b+1}, v{b+2}, s[30:31]')
            e(f'v_cndmask_b32 v{b+2}, v{b+2}, 0, s[30:31]')
            lab(f'L_nofix{p}')
            for i in range(2):
                e(f'v_lshlrev_b32 v{B+2*i}, 16, v{b+2-i}')
                e(f'v_and_b32 v{B+1+2*i}, s38, v{b+1-i}')
            for i in range(2):
                e(f'v_pk_add_f32 v[{A+2*i}:{A+1+2*i}], v[{A+2*i}:{A+1+2*i}], v[{B+2*i}:{B+1+2*i}]')
            e(f'ds_write_b16 v7, v{b} offset:{EL+128*p}')
            if OPT['r2']: continue
            for i in range(2):
                e(f'v_cvt_pk_bf16_f32 v{a+i}, v{A+2*i}, v{A+1+2*i}')
            e(f'ds_write_b64 v9, v[{a}:{a+1}] offset:{XL+2048*p}')
        for p in range(2 if OPT['r2'] else 0):
            ng = ' neg_lo:[0,1] neg_hi:[0,1]' if p else ''
            for i in range(2):
                e(f'v_pk_add_f32 v[{84+4*p+2*i}:{85+4*p+2*i}], v[{76+2*i}:{77+2*i}], v[{80+2*i}:{81+2*i}]{ng}')
        for p in range(2 if OPT['r2'] else 0):
            for i in range(2):
                e(f'v_cvt_pk_bf16_f32 v{64+2*p+i}, v{84+4*p+2*i}, v{85+4*p+2*i}')
        if OPT['r2']: e(f'ds_write2st64_b64 v9, v[64:65], v[66:67] offset0:{XL//512} offset1:{XL//512+4}')
    stamp()
    e('s_waitcnt lgkmcnt(0)')
    e('s_barrier')
    NK = 2 if OPT['r2'] else 4
    for kk in range(NK):
        for half in range(2):
            r = 64 + 4*kk + 2*half
            e(f'ds_read_b64_tr_b16 v[{r}:{r+1}], v8 offset:{XL + (32*kk+16*half)*32}')
    e(f'ds_read_b128 v[80:83], v3 offset:{EL+(768 if OPT["ld4"] else 256)}')
    e('s_waitcnt vmcnt(0)')
    e('v_add_u32 v101, 0x11111111, v15')
    e('v_lshrrev_b32 v12, v11, v101')
    for i in range(1, 4):
        e(f'v_lshrrev_b32 v{12+i}, {i}, v12')
    e('v_readfirstlane_b32 s36, v101')
    for kk in range(NK):
        e(f's_waitcnt lgkmcnt({2*NK - 1 - 2*kk})')
        for c in range(2):
            a = 48 + 4*c
            d = 64 + 4*kk
            t = 16 + 8*kk + 4*c
            cin = '0' if kk == 0 else f'v[{a}:{a+3}]'
            e(f'v_mfma_f32_16x16x32_bf16 v[{a}:{a+3}], v[{d}:{d+3}], v[{t}:{t+3}], {cin}')
    e('s_waitcnt lgkmcnt(0)')
    for c in range(2):
        e(f'v_mfma_f32_16x16x32_bf16 v[{56+4*c}:{59+4*c}], v[80:83], v[{16+4*c}:{19+4*c}], 0')
    e('s_cmp_eq_u32 s17, 15')
    e('s_nop 2')
    for i in range(4):
        e(f'v_cvt_pk_bf16_f32 v{96+i}, v{48+2*i}, v{48+2*i+1}')
    for i in range(4):
        e(f'v_bfi_b32 v{96+i}, s37, v{12+i}, v{96+i}')
    e(f'buffer_store_dwordx4 v[96:99], v10, s[12:15], s26 offen {OPT["stsc"]}')
    stamp()
    e('s_cbranch_scc0 L_p2')
    e('v_fmac_f32 v56, s44, v58')
    e('v_fmac_f32 v57, s44, v59')
    e('v_fmac_f32 v60, s44, v62')
    e('v_fmac_f32 v61, s44, v63')
    e('v_fmac_f32 v56, s42, v57')
    e('v_fmac_f32 v60, s43, v57')
    e('v_fma_f32 v56, -s43, v61, v56')
    e('v_fmac_f32 v60, s42, v61')
    e('s_mov_b64 exec, 0xffff')
    e('v_cvt_pk_bf16_f32 v100, v56, v60')
    e(f'buffer_store_dwordx2 v[100:101], v1, s[12:15], s27 offen {OPT["stsc"]}')
    e('s_mov_b64 exec, -1')
    e('s_branch L_p2')
    lab('L_p2x')
    e('s_waitcnt vmcnt(0)')
    e('v_add_u32 v101, 0x11111111, v15')
    e('s_nop 0')
    e('v_readfirstlane_b32 s36, v101')
    lab('L_p2')
    mapped(p2)
def issue(buf):
    e(f's_mov_b32 m0, s{20 if buf == 0 else 22}')
    e('s_add_u32 s39, s39, 1')
    for i in range(4):
        e(f'buffer_load_dwordx4 v{1 if i & 1 else 3}, s[12:15], s19 offen offset:{1024*i} {OPT["zsc"]} lds')
    E = 56 if buf == 0 else 172
    for i in range(2):
        e(f'buffer_load_dwordx4 v[{E+4*i}:{E+3+4*i}], v92, s[12:15], s21 offen offset:{64*i} {OPT["zsc"]}')
def check(buf, pend):
    E = 56 if buf == 0 else 172
    for p in range(2):
        e(f's_waitcnt vmcnt({pend+4-2*p})')
        for hb in range(2):
            for half in range(2):
                r = 64 + 8*p + 4*hb + 2*half
                e(f'ds_read_b64_tr_b16 v[{r}:{r+1}], v6 offset:{buf*32768 + p*2048 + half*1024 + hb*512}')
    e(f's_waitcnt vmcnt({pend})')
    for i in range(4):
        if OPT['tail']: e(f'v_mov_b32 v{88+i}, v{E+2*i}')
        else: e(f'v_cndmask_b32 v{88+i}, 0, v{E+2*i}, s[46:47]')
    e(f'v_bitop3_b32 v93, v{E+1}, v{E+3}, s36 bitop3:0x7e')
    e(f'v_bitop3_b32 v94, v{E+5}, v{E+7}, s36 bitop3:0x7e')
    if OPT['tail']: e('v_mfma_f32_16x16x32_bf16 v[84:87], v[16:19], v[88:91], 0')
    else: e('v_mfma_f32_16x16x32_bf16 v[96:99], v[20:23], v[88:91], 0')
    for p in range(2):
        for hb in range(2):
            e(f's_waitcnt lgkmcnt({6 - 4*p - 2*hb})')
            a = 96 + 4*(2*p + hb)
            d = 64 + 8*p + 4*hb
            cin = '0' if (a != 96 or OPT['tail']) else f'v[{a}:{a+3}]'
            e(f'v_mfma_f32_16x16x32_bf16 v[{a}:{a+3}], v[16:19], v[{d}:{d+3}], {cin}')
            e(f'v_bitop3_b32 v114, v{d}, v{d+1}, v113 bitop3:0x7e')
            e(f'v_bitop3_b32 v115, v{d+2}, v{d+3}, v113 bitop3:0x7e')
            if p == 0 and hb == 0: e('v_or_b32 v112, v114, v115')
            else: e('v_or3_b32 v112, v112, v114, v115')
    e('v_and_b32 v112, s37, v112')
    e('v_or3_b32 v112, v112, v93, v94')
    e('v_cmp_ne_u32 vcc, 0, v112')
    e('s_cbranch_vccz L_go')
def p2():
    e('s_mov_b32 s34, 0x200000')
    e('s_mov_b32 s35, 0x20000')
    e('s_mov_b32 s39, 0')
    if not OPT['t2pre']: p2_setup()
    e('s_add_u32 s22, s20, 32768')
    if OPT['tail']: e('s_lshl_b32 s47, s16, 4')
    i0 = len(L)
    p2_setup_b()
    e('v_and_b32 v12, 12, v4')
    e('v_bfe_u32 v13, v4, 1, 1')
    e('v_add_u32 v12, v12, v13')
    e('v_and_b32 v13, 1, v4')
    e('v_lshl_add_u32 v12, v13, 4, v12')
    e('v_lshrrev_b32 v12, v12, s36')
    e('v_lshlrev_b32 v13, 14, v12')
    e('v_bfi_b32 v113, 1, v12, v13')
    T = L[i0:]; del L[i0:]
    k = len(T) - OPT['split']
    L.extend(T[:k])
    stamp()
    if OPT['wst']: e('s_waitcnt vmcnt(0)')
    if OPT['wst'] > 1: e('s_barrier')
    if OPT['sleep']: e(f's_sleep {OPT["sleep"]}')
    stamp()
    if OPT['pipe']:
        issue(0)
        L.extend(T[k:])
        if OPT['rsleep']: e(f's_sleep {OPT["rsleep"]}')
        lab('L_round')
        issue(1)
        check(0, 6)
        issue(0)
        check(1, 6)
    else:
        issue(0)
        L.extend(T[k:])
        lab('L_round')
        check(0, 0)
        issue(0)
    e('s_cmp_lt_u32 s39, 100000')
    e('s_cbranch_scc1 L_round')
    lab('L_go')
    stamp()
    if OPT['cnt']:
        e('s_waitcnt lgkmcnt(0)')
        e('s_mul_i32 s39, s39, 100')
        e('s_add_u32 s66, s64, s39')
    (tail2 if OPT['tail'] else p2_tail)()
if __name__ == '__main__':
    parse(); gen(); finish(sys.argv[1], 180 if OPT['pipe'] else 172, 49152 if OPT['pipe'] else 29696)
```

```python
import sys, re
def probe(src, dst, k, i, op, nw=1024):
    dif = op == 'dif'; j = k; k = 0
    if dif: op = 'avg'
    arg = op == 'arg'
    if arg: op = 'max'
    mdf = op == 'mdf'
    if mdf: op = 'max'; dif = True
    s = open(src).read()
    code = f'''
.globl fnet_q_kernel
.p2align 8
.type fnet_q_kernel,@function
fnet_q_kernel:
    s_cmp_ge_u32 s2, 1
    s_cbranch_scc1 q_end
    s_load_dwordx2 s[4:5], s[0:1], 56
    v_lshlrev_b32 v1, 6, v0
    v_mov_b32 v2, -1
    v_mov_b32 v3, {'-1' if op == 'min' else '0'}
    s_waitcnt lgkmcnt(0)
    s_mov_b32 s8, s4
    s_and_b32 s9, s5, 0xffff
    s_mov_b32 s10, 0x1000000
    s_mov_b32 s11, 0x20000
    s_mov_b32 s12, {(8<<20) + 4096}
    s_mov_b32 s13, {(8<<20) + k*2048*64 + 4*i + 4096}
    s_mov_b32 s14, 1
q_l1:
    buffer_load_dword v4, v1, s[8:11], s12 offen
    buffer_load_dword v5, v1, s[8:11], s13 offen
    buffer_load_dword v6, v1, s[8:11], s12 offen offset:{4*j}
    s_waitcnt vmcnt(0)
    v_min_u32 v2, v2, v4
    {'v_sub_u32 v5, v5, v6' if dif else 's_nop 0'}
    v_lshl_add_u32 v7, s14, 6, v0
    {'v_lshl_add_u32 v5, v5, 10, v7' if arg else 's_nop 0'}
    v_{'add' if op=='avg' else op}_u32 v3, v3, v5
    s_add_u32 s12, s12, 4096
    s_add_u32 s13, s13, 4096
    s_add_u32 s14, s14, 1
    s_cmp_lt_u32 s14, {nw//64}
    s_cbranch_scc1 q_l1
    s_mov_b32 s14, 0
    s_mov_b32 s15, -1
    s_mov_b32 s16, {'-1' if op == 'min' else '0'}
q_l2:
    v_readlane_b32 s17, v2, s14
    v_readlane_b32 s18, v3, s14
    s_min_u32 s15, s15, s17
    s_{'add' if op=='avg' else op}_u32 s16, s16, s18
    s_add_u32 s14, s14, 1
    s_cmp_lt_u32 s14, 64
    s_cbranch_scc1 q_l2
    s_and_b32 s22, s16, 1023
    s_mul_i32 s17, s15, {0 if dif else 960 if op=='avg' else 1}
    s_sub_u32 s16, s16, s17
    s_min_u32 s16, s16, {960*1000 if op=='avg' else 1000}
    s_mul_i32 s16, s16, {546 if op=='avg' else 8*65536}
    s_lshr_b32 s16, s16, 16
    {'s_mul_i32 s16, s22, 5' if arg else 's_nop 0'}
    s_add_u32 s16, s16, 4000
    s_mov_b32 s19, 0
q_l3:
    s_memrealtime s[20:21]
    s_waitcnt lgkmcnt(0)
    s_sub_u32 s20, s20, s15
    s_add_u32 s19, s19, 1
    s_cmp_gt_u32 s19, 20000
    s_cbranch_scc1 q_end
    s_cmp_lt_u32 s20, s16
    s_cbranch_scc1 q_l3
q_end:
    s_endpgm
'''
    d = '''.p2align 6
.amdhsa_kernel fnet_q_kernel
  .amdhsa_next_free_vgpr 8
  .amdhsa_next_free_sgpr 32
  .amdhsa_accum_offset 8
  .amdhsa_group_segment_fixed_size 0
  .amdhsa_kernarg_size 64
  .amdhsa_user_sgpr_count 2
  .amdhsa_user_sgpr_kernarg_segment_ptr 1
  .amdhsa_system_sgpr_workgroup_id_x 1
.end_amdhsa_kernel
'''
    s = s.replace('; @launch grid=', '; @launch kernel=standalone__spectral_fnet__prompt_kernel grid=')
    s = s.replace('.amdgcn_target', '; @launch kernel=fnet_q_kernel grid=(1,1,1) block=(64,1,1) lds=0\n.amdgcn_target')
    s = s.replace('.section .rodata,"a"', code + '.section .rodata,"a"') + d
    open(dst, 'w').write(s)
if __name__ == '__main__':
    src = sys.argv[1]
    for n, spec in enumerate(sys.argv[2:]):
        k, i, op = spec.split(',')[:3]
        nw = int(spec.split(',')[3]) if spec.count(',') > 2 else 1024
        probe(src, f'q{n}.s', int(k), int(i), op, nw)
```

```python
import gen2
gen2.FOLD = 1; gen2.EX = 16384; gen2.XL = 24576; gen2.ZOFF = 2 << 20
from gen2 import *
OPT.update(noe=0, epf=0, xpf=0, hint=0, hpos=0, hs=7, hsplit=50, map=2, una=0, ld4=1, ka=0, tail=1, r2=1, t1pre=0, t2pre=0, pipe=0, split=0, xsc='', pf=1, sleep=0, rsleep=0, stsc='sc1', cnt=0, wst=1, osc='')
EL = XL + 4096
HOFF = ZOFF + (1<<20) + 0x4000
import re
def remap(i0):
    def vm(n): return n + 116 if (n in (1, 3) or 6 <= n <= 55) else n
    def sm(n): return n + 31 if 17 <= n <= 29 else n
    for i in range(i0, len(L)):
        t = L[i]
        t = re.sub(r'\bv(\d+)\b', lambda m: 'v%d' % vm(int(m.group(1))), t)
        t = re.sub(r'\bv\[(\d+):(\d+)\]', lambda m: 'v[%d:%d]' % (vm(int(m.group(1))), vm(int(m.group(2)))), t)
        t = re.sub(r'\bs(\d+)\b', lambda m: 's%d' % sm(int(m.group(1))), t)
        L[i] = t
def mapped(f):
    i0 = len(L); f(); remap(i0)
def lean_tables():
    e('v_lshl_add_u32 v6, v4, 2, s16')
    e('v_cvt_f32_u32 v7, v6')
    e('v_cvt_f32_u32 v8, v5')
    e(f'v_mul_f32 v7, {f32(1/128)}, v7')
    e('v_mul_f32 v8, 4.0, v8')
    e('v_mul_f32 v12, v7, v8')
    e(f'v_mul_f32 v8, {f32(13)}, v7')
    e('v_cmp_eq_u32 vcc, 0, v6')
    e('v_mov_b32 v9, 0xbf803f80')
    for j in range(8):
        e(f'v_cos_f32 v{48+(j&1)}, v12')
        e(f'v_sin_f32 v{50+(j&1)}, v12')
        if j < 7: e(f'v_add_f32 v12, v12, v{8 if j == 3 else 7}')
        else: e('s_mov_b32 s22, 0x80008000')
        if j & 1:
            e(f'v_cvt_pk_bf16_f32 v{16+j//2}, v48, v49')
            e(f'v_cvt_pk_bf16_f32 v{20+j//2}, v50, v51')
            e(f'v_cndmask_b32 v{20+j//2}, v{20+j//2}, v9, vcc')
    e('s_bitcmp1_b32 s16, 1')
    e('s_cselect_b32 s24, s22, 0')
    e('s_bitcmp1_b32 s16, 0')
    e('s_cbranch_scc1 L_odd')
    for i in range(8):
        e(f'v_xor_b32 v{24+i}, s24, v{16+i}')
    e('s_mov_b32 s23, 0')
    e('s_branch L_tab')
    lab('L_odd')
    e('s_xor_b32 s25, s22, s24')
    e('s_mov_b32 s23, s22')
    for i in range(4):
        e(f'v_xor_b32 v{28+i}, s24, v{16+i}')
    for i in range(4):
        e(f'v_xor_b32 v{24+i}, s25, v{20+i}')
    lab('L_tab')
def tail2():
    for dl in range(4):
        e(f'v_cvt_pk_bf16_f32 v{64+dl}, v{96+4*dl}, v{96+4*dl+1}')
    e(f'ds_write_b128 v7, v[64:67] offset:{EX}')
    e('v_readlane_b32 s46, v84, s47')
    e('s_waitcnt lgkmcnt(0)')
    e('s_barrier')
    stamp()
    e('s_cmp_lg_u32 s28, 0')
    e('s_cbranch_scc1 L_extra')
    e(f'ds_read_b128 v[72:75], v8 offset:{EX}')
    for r in range(4): e(f'v_mov_b32 v{104+r}, s46')
    for r in range(4): e(f'v_sub_f32 v{108+r}, 0, v104')
    e('s_waitcnt lgkmcnt(0)')
    for e0 in range(2):
        for c in range(2):
            a = 80 + 8*e0 + 4*c
            e(f'v_mfma_f32_16x16x32_bf16 v[{a}:{a+3}], v[72:75], v[{24+8*e0+4*c}:{27+8*e0+4*c}], 0')
    e('s_nop 4')
    def p(r): return f'v[{r}:{r+1}]'
    for e0 in range(2):
        R, I = 80 + 8*e0, 84 + 8*e0
        C, Sn = 40 + 8*e0, 44 + 8*e0
        for r in (0, 2):
            e(f'v_pk_mul_f32 {p(96+r)}, {p(R+r)}, {p(C+r)}')
            e(f'v_pk_mul_f32 {p(100+r)}, {p(R+r)}, {p(Sn+r)}')
        for r in (0, 2):
            e(f'v_pk_fma_f32 {p(96+r)}, {p(I+r)}, {p(Sn+r)}, {p(96+r)} neg_lo:[1,0,0] neg_hi:[1,0,0]')
            e(f'v_pk_fma_f32 {p(100+r)}, {p(I+r)}, {p(C+r)}, {p(100+r)}')
        if e0: e('ds_bpermute_b32 v72, v11, v104')
        for r in range(4):
            e(f'v_cvt_pk_bf16_f32 v{64+4*e0+r}, v{96+r}, v{100+r}')
        e('s_nop 1')
        e(f'v_mfma_f32_16x16x32_bf16 v[{104+4*e0}:{107+4*e0}], v[{64+4*e0}:{67+4*e0}], v[24:27], v[{104+4*e0}:{107+4*e0}]')
    e('s_cmp_eq_u32 s29, 0')
    e('s_waitcnt vmcnt(0) lgkmcnt(0)')
    e('s_nop 5')
    for r in range(4):
        e(f'v_cvt_pk_bf16_f32 v{64+r}, v{104+r}, v{108+r}')
    e(f'buffer_store_dwordx4 v[64:67], v9, s[32:35], s26 offen {OPT["osc"]}')
    e('s_cbranch_scc1 L_end')
    for r in range(1, 4):
        e(f'v_cvt_pk_bf16_f32 v{68+r}, v{104+4-r}, v{108+3-r}')
    e('v_cvt_pk_bf16_f32 v68, v72, v111')
    e(f'buffer_store_dwordx4 v[68:71], v10, s[32:35], s27 offen {OPT["osc"]}')
    stamp()
    flush_stamps()
    e('s_endpgm')
    lab('L_extra')
    e('s_waitcnt vmcnt(0)')
    e('v_mov_b32 v1, s36')
    e('s_mov_b64 exec, 1')
    e('buffer_store_dword v1, off, s[12:15], 0')
    lab('L_end')
    e('s_endpgm')
def hint(pos):
    if not OPT['hint'] or OPT['hpos'] != pos: return
    e('s_mov_b64 exec, s[62:63]')
    e('buffer_store_dword v101, v95, s[12:15], s61 offen sc1')
    e('s_mov_b64 exec, -1')
def gen():
    L.append(f'.globl {NAME}\n.p2align 8\n.type {NAME},@function\n{NAME}:')
    e('s_cmp_gt_u32 s2, 256')
    e('s_cbranch_scc1 L_end')
    stamp()
    e('s_load_dwordx2 s[8:9], s[0:1], 0')
    def ka2():
        e('s_load_dwordx2 s[12:13], s[0:1], 56')
        e('s_load_dwordx2 s[32:33], s[0:1], 40')
    if not OPT['ka']: ka2()
    if OPT['pf']:
        e('s_getpc_b64 s[40:41]')
        lab('L_pc')
        e(f'v_min_u32 v1, (L_end-L_pc)/64, v0')
        e('v_lshlrev_b32 v1, 6, v1')
        e('global_load_dword v115, v1, s[40:41]')
    if OPT['map'] < 2: e('s_and_b32 s17, s2, 7')
    if OPT['map'] == 0:
        e('s_sub_u32 s18, 16, s17')
        e('s_cmp_eq_u32 s17, 0')
        e('s_cselect_b32 s18, 8, s18')
        e('s_bitcmp1_b32 s2, 3')
        e('s_cselect_b32 s18, s18, s17')
    elif OPT['map'] == 1:
        e('s_bitcmp1_b32 s2, 3')
        e('s_addc_u32 s18, s17, s17')
    elif OPT['map'] == 2: e('s_and_b32 s18, s2, 15')
    if OPT['map'] < 3: e('s_lshr_b32 s17, s2, 4')
    elif OPT['map'] == 3:
        e('s_lshr_b32 s18, s2, 5')
        e('s_bitcmp1_b32 s2, 2')
        e('s_addc_u32 s18, s18, s18')
        e('s_and_b32 s17, s2, 3')
        e('s_bfe_u32 s20, s2, 0x20003')
        e('s_lshl2_add_u32 s17, s17, s20')
    else:
        e('s_lshr_b32 s18, s2, 4')
        e('s_and_b32 s17, s2, 7')
        e('s_bitcmp1_b32 s2, 3')
        e('s_addc_u32 s17, s17, s17')
    if not OPT['ld4']:
        e('v_lshrrev_b32 v3, 1, v0')
        e('v_lshl_add_u32 v6, v3, 4, s18')
        e('v_and_b32 v7, 1, v0')
        e('v_lshl_add_u32 v7, s17, 1, v7')
        e('v_lshlrev_b32 v8, 4, v7')
        e('v_lshl_add_u32 v73, v6, 10, v8')
        e('v_sub_u32 v6, 0x800, v6')
        e('v_and_b32 v6, 0x7ff, v6')
        e('v_sub_u32 v8, 1008, v8')
        e('v_lshl_add_u32 v74, v6, 10, v8')
        e('v_cmp_eq_u32 s[30:31], 0, v7')
        if OPT['una']: e('v_cmp_ne_u32 vcc, 31, v7')
        else: e('v_cmp_eq_u32 vcc, 0, v7')
        e('v_bfrev_b32 v11, 2')
        e('v_cndmask_b32 v75, v74, v11, vcc')
    else:
        e('v_lshrrev_b32 v3, 2, v0')
        e('v_lshl_add_u32 v6, v3, 4, s18')
        e('v_and_b32 v7, 3, v0')
        e('v_lshl_add_u32 v7, s17, 2, v7')
        e('v_lshlrev_b32 v8, 3, v7')
        e('v_lshl_add_u32 v92, v6, 10, v8')
        e('v_max_u32 v8, 4, v8')
        e('v_sub_u32 v6, 0x800, v6')
        e('v_and_b32 v6, 0x7ff, v6')
        e('v_sub_u32 v8, 1016, v8')
        e('v_lshl_add_u32 v93, v6, 10, v8')
        e('v_xor_b32 v94, 0x100000, v93')
        e('v_cmp_eq_u32 s[30:31], 0, v7')
        e('s_mov_b32 s19, 0x100000')
        if OPT['xpf']:
            e('s_bitcmp1_b32 s2, 4')
            e('s_cselect_b64 vcc, -1, 0')
            e('s_bitcmp1_b32 s2, 5')
            e('s_cselect_b32 s20, s19, 0')
            e('v_cndmask_b32 v91, v92, v93, vcc')
            e('v_xor_b32 v91, s20, v91')
    e(f's_mov_b32 s10, {0x200000 + 4*OPT["una"]}')
    e('s_mov_b32 s11, 0x20000')
    e('s_mov_b32 s14, 0x1000000')
    e('s_mov_b32 s15, s11')
    i0 = len(L); (lean_tables if OPT['r2'] else p1_tables)(); T1 = L[i0:]; del L[i0:]
    L.extend(T1[:OPT['t1pre']])
    e('s_waitcnt lgkmcnt(0)')
    if not OPT['ld4']:
        e(f'buffer_load_dwordx4 v[64:67], v73, s[8:11], 0 offen {OPT["xsc"]}')
        e(f'buffer_load_dwordx4 v[68:71], v74, s[8:11], 0 offen offset:{2 if OPT["una"] else 0} {OPT["xsc"]}')
        e(f'buffer_load_dword v72, v75, s[8:11], 0 offen offset:{0 if OPT["una"] else 16} {OPT["xsc"]}')
    else:
        if OPT['hint']: e('buffer_load_dword v15, off, s[12:15], 0')
        if OPT['xpf']: e('buffer_load_dword v114, v91, s[8:11], 0 offen')
        e('buffer_load_dwordx2 v[64:65], v92, s[8:11], 0 offen ' + OPT['xsc'])
        e('buffer_load_dwordx3 v[68:70], v93, s[8:11], 0 offen ' + OPT['xsc'])
        e('buffer_load_dwordx2 v[66:67], v92, s[8:11], s19 offen ' + OPT['xsc'])
        e('buffer_load_dwordx3 v[72:74], v94, s[8:11], 0 offen ' + OPT['xsc'])
    if OPT['ka']:
        ka2()
        L.extend(T1[OPT['t1pre']:OPT['t1pre']+30]); del T1[OPT['t1pre']:OPT['t1pre']+30]
        e('s_waitcnt lgkmcnt(0)')
    e('v_lshrrev_b32 v1, 6, v0')
    e('v_and_b32 v2, 63, v0')
    e('v_readfirstlane_b32 s16, v1')
    e('v_and_b32 v4, 15, v2')
    e('v_lshrrev_b32 v5, 4, v2')
    e('s_mov_b32 s37, 0x00010001')
    if not OPT['hint']: e('buffer_load_dword v15, off, s[12:15], 0')
    stamp()
    L.extend(T1[OPT['t1pre']:])
    e('v_lshlrev_b32 v8, 3, v2')
    if OPT['r2']:
        e('v_and_b32 v9, 64, v0')
        e('v_lshl_add_u32 v8, v9, 5, v8')
    e(f'v_lshlrev_b32 v9, {3 if OPT["ld4"] else 4}, v0')
    e('v_and_b32 v7, 0x63, v3')
    e('v_bfe_u32 v11, v3, 2, 2')
    e('v_lshl_add_u32 v7, v11, 3, v7')
    e('v_bfe_u32 v11, v3, 4, 1')
    e('v_lshl_add_u32 v7, v11, 2, v7')
    e(f'v_and_b32 v11, {3 if OPT["ld4"] else 1}, v0')
    e('v_lshl_add_u32 v7, v11, 7, v7')
    e('v_lshlrev_b32 v7, 1, v7')
    e('v_and_b32 v3, 3, v4')
    e('v_lshlrev_b32 v3, 6, v3')
    e('v_lshl_add_u32 v3, v5, 4, v3')
    e('v_xor_b32 v10, s18, v4')
    e('v_lshlrev_b32 v10, 7, v10')
    e('v_lshl_add_u32 v10, v6, 14, v10')
    e('v_lshl_add_u32 v10, v5, 4, v10')
    e('v_lshlrev_b32 v1, 7, v6')
    e('s_lshr_b32 s26, s17, 1')
    e('s_lshl_b32 s26, s26, 11')
    e('s_and_b32 s27, s17, 1')
    e('s_lshl_b32 s27, s27, 6')
    e('s_add_u32 s26, s26, s27')
    e(f's_add_u32 s26, s26, {ZOFF}')
    e('s_lshl_b32 s27, s18, 3')
    e(f's_add_u32 s27, s27, {ZOFF + (1<<20)}')
    e('s_and_b32 s44, s23, 0x80000000')
    e('s_or_b32 s44, s44, 1.0')
    e('s_and_b32 s45, s24, 0x80000000')
    e('s_or_b32 s45, s45, 1.0')
    e('s_bitcmp1_b32 s16, 0')
    e('s_cselect_b32 s42, 0, s45')
    e('s_cselect_b32 s43, s45, 0')
    e('s_mov_b32 s38, 0xffff0000')
    if OPT['hint']:
        e('s_lshr_b32 s61, s2, 4')
        e('s_lshl2_add_u32 s61, s61, s16')
        e('s_cmp_eq_u32 s61, 63')
        e('s_cselect_b64 s[62:63], 0xff, 0')
        e('s_and_b32 s61, s2, 15')
        e(f's_lshl_b32 s61, s61, {OPT["hs"]}')
        e(f's_add_u32 s61, s61, {HOFF}')
        e('v_lshlrev_b32 v95, 11, v2')
    e('v_lshlrev_b32 v11, 2, v5')
    if OPT['t2pre']: mapped(p2_setup)
    e('s_cmp_eq_u32 s2, 256')
    e('s_cbranch_scc1 L_p2x')
    stamp()
    if not OPT['ld4']:
        e('s_waitcnt vmcnt(3)')
        for i in range(4):
            e(f'v_lshlrev_b32 v{76+2*i}, 16, v{64+i}')
            e(f'v_and_b32 v{77+2*i}, s38, v{64+i}')
        e('s_waitcnt vmcnt(2)')
        if OPT['una']:
            for i in (0, 1, 2, 3):
                e(f'v_and_b32 v{84+2*i}, s38, v{68+3-i}')
                e(f'v_lshlrev_b32 v{85+2*i}, 16, v{68+3-i}')
            e('v_cndmask_b32 v84, v84, 0, s[30:31]')
        else: e(f'ds_write_b16 v7, v68 offset:{EL}')
        for i in (3, 2, 1, 0) if not OPT['una'] else ():
            e(f'v_and_b32 v{85+2*i}, s38, v{68+3-i}')
            if i == 0: e('s_waitcnt vmcnt(1)')
            e(f'v_lshlrev_b32 v{84+2*i}, 16, v{68+4-i}')
        for i in (3, 2, 1, 0):
            e(f'v_pk_add_f32 v[{76+2*i}:{77+2*i}], v[{76+2*i}:{77+2*i}], v[{84+2*i}:{85+2*i}]')
        for i in (3, 2, 1, 0):
            e(f'v_cvt_pk_bf16_f32 v{64+i}, v{76+2*i}, v{77+2*i}')
        e(f'ds_write_b128 v9, v[64:67] offset:{XL}')
        if OPT['una']:
            e('s_waitcnt vmcnt(1)')
            e(f'ds_write_b16 v7, v72 offset:{EL}')
    else:
        H = OPT['hint']
        if H:
            e(f's_waitcnt vmcnt({4+OPT["xpf"]})')
            e('v_add_u32 v101, 0x11111111, v15')
        hint(0)
        e('s_cmp_eq_u32 s17, 0')
        for p in range(2):
            a, b, A, B = 64+2*p, 68+4*p, 76+4*p, 84+4*p
            e(f's_waitcnt vmcnt({4-2*p-H+(H if OPT["hpos"] <= p else 0)})')
            if p == 0: hint(1)
            for i in range(2):
                e(f'v_lshlrev_b32 v{A+2*i}, 16, v{a+i}')
                e(f'v_and_b32 v{A+1+2*i}, s38, v{a+i}')
            e(f's_waitcnt vmcnt({3-2*p-H+(H if OPT["hpos"] <= 1 else 0)})')
            if p == 1: hint(2)
            e(f's_cbranch_scc0 L_nofix{p}')
            e(f'v_cndmask_b32 v{b}, v{b}, v{b+1}, s[30:31]')
            e(f'v_cndmask_b32 v{b+1}, v{b+1}, v{b+2}, s[30:31]')
            e(f'v_cndmask_b32 v{b+2}, v{b+2}, 0, s[30:31]')
            lab(f'L_nofix{p}')
            for i in range(2):
                e(f'v_lshlrev_b32 v{B+2*i}, 16, v{b+2-i}')
                e(f'v_and_b32 v{B+1+2*i}, s38, v{b+1-i}')
            for i in range(2):
                e(f'v_pk_add_f32 v[{A+2*i}:{A+1+2*i}], v[{A+2*i}:{A+1+2*i}], v[{B+2*i}:{B+1+2*i}]')
            e(f'ds_write_b16 v7, v{b} offset:{EL+128*p}')
            if OPT['r2']: continue
            for i in range(2):
                e(f'v_cvt_pk_bf16_f32 v{a+i}, v{A+2*i}, v{A+1+2*i}')
            e(f'ds_write_b64 v9, v[{a}:{a+1}] offset:{XL+2048*p}')
        for p in range(2 if OPT['r2'] else 0):
            ng = ' neg_lo:[0,1] neg_hi:[0,1]' if p else ''
            for i in range(2):
                e(f'v_pk_add_f32 v[{84+4*p+2*i}:{85+4*p+2*i}], v[{76+2*i}:{77+2*i}], v[{80+2*i}:{81+2*i}]{ng}')
        for p in range(2 if OPT['r2'] else 0):
            for i in range(2):
                e(f'v_cvt_pk_bf16_f32 v{64+2*p+i}, v{84+4*p+2*i}, v{85+4*p+2*i}')
        if OPT['r2']: e(f'ds_write2st64_b64 v9, v[64:65], v[66:67] offset0:{XL//512} offset1:{XL//512+4}')
    stamp()
    e('s_waitcnt lgkmcnt(0)')
    e('s_barrier')
    NK = 2 if OPT['r2'] else 4
    for kk in range(NK):
        for half in range(2):
            r = 64 + 4*kk + 2*half
            e(f'ds_read_b64_tr_b16 v[{r}:{r+1}], v8 offset:{XL + (32*kk+16*half)*32}')
    e(f'ds_read_b128 v[80:83], v3 offset:{EL+(768 if OPT["ld4"] else 256)}')
    if not OPT['hint']:
        e('s_waitcnt vmcnt(0)')
        e('v_add_u32 v101, 0x11111111, v15')
    e('v_lshrrev_b32 v12, v11, v101')
    for i in range(1, 4):
        e(f'v_lshrrev_b32 v{12+i}, {i}, v12')
    e('v_readfirstlane_b32 s36, v101')
    for kk in range(NK):
        e(f's_waitcnt lgkmcnt({2*NK - 1 - 2*kk})')
        for c in range(2):
            a = 48 + 4*c
            d = 64 + 4*kk
            t = 16 + 8*kk + 4*c
            cin = '0' if kk == 0 else f'v[{a}:{a+3}]'
            e(f'v_mfma_f32_16x16x32_bf16 v[{a}:{a+3}], v[{d}:{d+3}], v[{t}:{t+3}], {cin}')
    e('s_waitcnt lgkmcnt(0)')
    for c in range(2):
        e(f'v_mfma_f32_16x16x32_bf16 v[{56+4*c}:{59+4*c}], v[80:83], v[{16+4*c}:{19+4*c}], 0')
    e(f's_cmp_eq_u32 s17, {15 + 10*OPT["noe"]}')
    e('s_nop 2')
    for i in range(4):
        e(f'v_cvt_pk_bf16_f32 v{96+i}, v{48+2*i}, v{48+2*i+1}')
    for i in range(4):
        e(f'v_bfi_b32 v{96+i}, s37, v{12+i}, v{96+i}')
    e(f'buffer_store_dwordx4 v[96:99], v10, s[12:15], s26 offen {OPT["stsc"]}')
    stamp()
    e('s_cbranch_scc0 L_p2')
    e('v_fmac_f32 v56, s44, v58')
    e('v_fmac_f32 v57, s44, v59')
    e('v_fmac_f32 v60, s44, v62')
    e('v_fmac_f32 v61, s44, v63')
    e('v_fmac_f32 v56, s42, v57')
    e('v_fmac_f32 v60, s43, v57')
    e('v_fma_f32 v56, -s43, v61, v56')
    e('v_fmac_f32 v60, s42, v61')
    e('s_mov_b64 exec, 0xffff')
    e('v_cvt_pk_bf16_f32 v100, v56, v60')
    e(f'buffer_store_dwordx2 v[100:101], v1, s[12:15], s27 offen {OPT["stsc"]}')
    e('s_mov_b64 exec, -1')
    e('s_branch L_p2')
    lab('L_p2x')
    if OPT['epf']:
        e('v_lshlrev_b32 v95, 7, v0')
        e(f's_mov_b32 s61, {ZOFF + (1<<20)}')
        e('buffer_load_dword v114, v95, s[12:15], s61 offen')
    e('s_waitcnt vmcnt(0)')
    e('v_add_u32 v101, 0x11111111, v15')
    e('s_nop 0')
    e('v_readfirstlane_b32 s36, v101')
    lab('L_p2')
    mapped(p2)
def issue(buf):
    e(f's_mov_b32 m0, s{20 if buf == 0 else 22}')
    e('s_add_u32 s39, s39, 1')
    for i in range(4):
        e(f'buffer_load_dwordx4 v{1 if i & 1 else 3}, s[12:15], s19 offen offset:{1024*i} {OPT["zsc"]} lds')
    E = 56 if buf == 0 else 172
    for i in range(2):
        e(f'buffer_load_dwordx4 v[{E+4*i}:{E+3+4*i}], v92, s[12:15], s21 offen offset:{64*i} {OPT["zsc"]}')
def check(buf, pend):
    E = 56 if buf == 0 else 172
    for p in range(2):
        e(f's_waitcnt vmcnt({pend+4-2*p})')
        for hb in range(2):
            for half in range(2):
                r = 64 + 8*p + 4*hb + 2*half
                e(f'ds_read_b64_tr_b16 v[{r}:{r+1}], v6 offset:{buf*32768 + p*2048 + half*1024 + hb*512}')
    e(f's_waitcnt vmcnt({pend})')
    for i in range(4):
        if OPT['tail']: e(f'v_mov_b32 v{88+i}, v{E+2*i}')
        else: e(f'v_cndmask_b32 v{88+i}, 0, v{E+2*i}, s[46:47]')
    e(f'v_bitop3_b32 v93, v{E+1}, v{E+3}, s36 bitop3:0x7e')
    e(f'v_bitop3_b32 v94, v{E+5}, v{E+7}, s36 bitop3:0x7e')
    if OPT['tail']: e('v_mfma_f32_16x16x32_bf16 v[84:87], v[16:19], v[88:91], 0')
    else: e('v_mfma_f32_16x16x32_bf16 v[96:99], v[20:23], v[88:91], 0')
    for p in range(2):
        for hb in range(2):
            e(f's_waitcnt lgkmcnt({6 - 4*p - 2*hb})')
            a = 96 + 4*(2*p + hb)
            d = 64 + 8*p + 4*hb
            cin = '0' if (a != 96 or OPT['tail']) else f'v[{a}:{a+3}]'
            e(f'v_mfma_f32_16x16x32_bf16 v[{a}:{a+3}], v[16:19], v[{d}:{d+3}], {cin}')
            e(f'v_bitop3_b32 v114, v{d}, v{d+1}, v113 bitop3:0x7e')
            e(f'v_bitop3_b32 v115, v{d+2}, v{d+3}, v113 bitop3:0x7e')
            if p == 0 and hb == 0: e('v_or_b32 v112, v114, v115')
            else: e('v_or3_b32 v112, v112, v114, v115')
    e('v_and_b32 v112, s37, v112')
    if not OPT['noe']: e('v_or3_b32 v112, v112, v93, v94')
    e('v_cmp_ne_u32 vcc, 0, v112')
    e('s_cbranch_vccz L_go')
def p2():
    e('s_mov_b32 s34, 0x200000')
    e('s_mov_b32 s35, 0x20000')
    e('s_mov_b32 s39, 0')
    if not OPT['t2pre']: p2_setup()
    e('s_add_u32 s22, s20, 32768')
    if OPT['tail']: e('s_lshl_b32 s47, s16, 4')
    i0 = len(L)
    p2_setup_b()
    e('v_and_b32 v12, 12, v4')
    e('v_bfe_u32 v13, v4, 1, 1')
    e('v_add_u32 v12, v12, v13')
    e('v_and_b32 v13, 1, v4')
    e('v_lshl_add_u32 v12, v13, 4, v12')
    e('v_lshrrev_b32 v12, v12, s36')
    e('v_lshlrev_b32 v13, 14, v12')
    e('v_bfi_b32 v113, 1, v12, v13')
    T = L[i0:]; del L[i0:]
    k = len(T) - OPT['split']
    if OPT['hint']:
        e('s_and_b32 s61, s2, 7')
        e('s_lshl_b32 s61, s61, 11')
        e(f's_add_u32 s61, s61, {HOFF}')
        e(f'v_lshlrev_b32 v95, {OPT["hs"]}, v4')
        T.insert(k - OPT['hsplit'], '    buffer_load_dword v112, v95, s[12:15], s61 offen sc1'); k += 1
    L.extend(T[:k])
    stamp()
    if OPT['hint']:
        lab('L_hint')
        e('s_waitcnt vmcnt(0)')
        e('v_cmp_ne_u32 vcc, s36, v112')
        e('s_cbranch_vccz L_hok')
        e('buffer_load_dword v112, v95, s[12:15], s61 offen sc1')
        e('s_add_u32 s39, s39, 1')
        e('s_cmp_lt_u32 s39, 50000')
        e('s_cbranch_scc1 L_hint')
        lab('L_hok')
    if OPT['wst']: e('s_waitcnt vmcnt(0)')
    if OPT['wst'] > 1: e('s_barrier')
    if OPT['sleep']: e(f's_sleep {OPT["sleep"]}')
    stamp()
    if OPT['pipe']:
        issue(0)
        L.extend(T[k:])
        if OPT['rsleep']: e(f's_sleep {OPT["rsleep"]}')
        lab('L_round')
        issue(1)
        check(0, 6)
        issue(0)
        check(1, 6)
    else:
        issue(0)
        L.extend(T[k:])
        lab('L_round')
        check(0, 0)
        issue(0)
    e('s_cmp_lt_u32 s39, 100000')
    e('s_cbranch_scc1 L_round')
    lab('L_go')
    stamp()
    if OPT['cnt']:
        e('s_waitcnt lgkmcnt(0)')
        e('s_mul_i32 s39, s39, 100')
        e('s_add_u32 s66, s64, s39')
    (tail2 if OPT['tail'] else p2_tail)()
if __name__ == '__main__':
    parse(); gen(); finish(sys.argv[1], 180 if OPT['pipe'] else 172, 49152 if OPT['pipe'] else 29696)
```

```python
import gen2
gen2.FOLD = 1; gen2.EX = 16384; gen2.XL = 24576; gen2.ZOFF = 2 << 20
from gen2 import *
OPT.update(noe=0, epf=0, xpf=0, hint=0, hpos=0, hs=7, hsplit=50, map=2, una=0, ld4=1, ka=0, tail=1, r2=1, t1pre=0, t2pre=0, pipe=0, split=0, xsc='', pf=1, sleep=0, rsleep=0, stsc='sc1', cnt=0, wst=1, osc='')
EL = XL + 4096
HOFF = ZOFF + (1<<20) + 0x4000
import re
def remap(i0):
    def vm(n): return n + 116 if (n in (1, 3) or 6 <= n <= 55) else n
    def sm(n): return n + 31 if 17 <= n <= 29 else n
    for i in range(i0, len(L)):
        t = L[i]
        t = re.sub(r'\bv(\d+)\b', lambda m: 'v%d' % vm(int(m.group(1))), t)
        t = re.sub(r'\bv\[(\d+):(\d+)\]', lambda m: 'v[%d:%d]' % (vm(int(m.group(1))), vm(int(m.group(2)))), t)
        t = re.sub(r'\bs(\d+)\b', lambda m: 's%d' % sm(int(m.group(1))), t)
        L[i] = t
def mapped(f):
    i0 = len(L); f(); remap(i0)
def lean_tables():
    e('v_lshl_add_u32 v6, v4, 2, s16')
    e('v_cvt_f32_u32 v7, v6')
    e('v_cvt_f32_u32 v8, v5')
    e(f'v_mul_f32 v7, {f32(1/128)}, v7')
    e('v_mul_f32 v8, 4.0, v8')
    e('v_mul_f32 v12, v7, v8')
    e(f'v_mul_f32 v8, {f32(13)}, v7')
    e('v_cmp_eq_u32 vcc, 0, v6')
    e('v_mov_b32 v9, 0xbf803f80')
    for j in range(8):
        e(f'v_cos_f32 v{48+(j&1)}, v12')
        e(f'v_sin_f32 v{50+(j&1)}, v12')
        if j < 7: e(f'v_add_f32 v12, v12, v{8 if j == 3 else 7}')
        else: e('s_mov_b32 s22, 0x80008000')
        if j & 1:
            e(f'v_cvt_pk_bf16_f32 v{16+j//2}, v48, v49')
            e(f'v_cvt_pk_bf16_f32 v{20+j//2}, v50, v51')
            e(f'v_cndmask_b32 v{20+j//2}, v{20+j//2}, v9, vcc')
    e('s_bitcmp1_b32 s16, 1')
    e('s_cselect_b32 s24, s22, 0')
    e('s_bitcmp1_b32 s16, 0')
    e('s_cbranch_scc1 L_odd')
    for i in range(8):
        e(f'v_xor_b32 v{24+i}, s24, v{16+i}')
    e('s_mov_b32 s23, 0')
    e('s_branch L_tab')
    lab('L_odd')
    e('s_xor_b32 s25, s22, s24')
    e('s_mov_b32 s23, s22')
    for i in range(4):
        e(f'v_xor_b32 v{28+i}, s24, v{16+i}')
    for i in range(4):
        e(f'v_xor_b32 v{24+i}, s25, v{20+i}')
    lab('L_tab')
def tail2():
    for dl in range(4):
        e(f'v_cvt_pk_bf16_f32 v{64+dl}, v{96+4*dl}, v{96+4*dl+1}')
    e(f'ds_write_b128 v7, v[64:67] offset:{EX}')
    e('v_readlane_b32 s46, v84, s47')
    e('s_waitcnt lgkmcnt(0)')
    e('s_barrier')
    stamp()
    e('s_cmp_lg_u32 s28, 0')
    e('s_cbranch_scc1 L_extra')
    e(f'ds_read_b128 v[72:75], v8 offset:{EX}')
    for r in range(4): e(f'v_mov_b32 v{104+r}, s46')
    for r in range(4): e(f'v_sub_f32 v{108+r}, 0, v104')
    e('s_waitcnt lgkmcnt(0)')
    for e0 in range(2):
        for c in range(2):
            a = 80 + 8*e0 + 4*c
            e(f'v_mfma_f32_16x16x32_bf16 v[{a}:{a+3}], v[72:75], v[{24+8*e0+4*c}:{27+8*e0+4*c}], 0')
    e('s_nop 4')
    def p(r): return f'v[{r}:{r+1}]'
    for e0 in range(2):
        R, I = 80 + 8*e0, 84 + 8*e0
        C, Sn = 40 + 8*e0, 44 + 8*e0
        for r in (0, 2):
            e(f'v_pk_mul_f32 {p(96+r)}, {p(R+r)}, {p(C+r)}')
            e(f'v_pk_mul_f32 {p(100+r)}, {p(R+r)}, {p(Sn+r)}')
        for r in (0, 2):
            e(f'v_pk_fma_f32 {p(96+r)}, {p(I+r)}, {p(Sn+r)}, {p(96+r)} neg_lo:[1,0,0] neg_hi:[1,0,0]')
            e(f'v_pk_fma_f32 {p(100+r)}, {p(I+r)}, {p(C+r)}, {p(100+r)}')
        if e0: e('ds_bpermute_b32 v72, v11, v104')
        for r in range(4):
            e(f'v_cvt_pk_bf16_f32 v{64+4*e0+r}, v{96+r}, v{100+r}')
        e('s_nop 1')
        e(f'v_mfma_f32_16x16x32_bf16 v[{104+4*e0}:{107+4*e0}], v[{64+4*e0}:{67+4*e0}], v[24:27], v[{104+4*e0}:{107+4*e0}]')
    e('s_cmp_eq_u32 s29, 0')
    e('s_waitcnt vmcnt(0) lgkmcnt(0)')
    e('s_nop 5')
    for r in range(4):
        e(f'v_cvt_pk_bf16_f32 v{64+r}, v{104+r}, v{108+r}')
    e(f'buffer_store_dwordx4 v[64:67], v9, s[32:35], s26 offen {OPT["osc"]}')
    e('s_cbranch_scc1 L_end')
    for r in range(1, 4):
        e(f'v_cvt_pk_bf16_f32 v{68+r}, v{104+4-r}, v{108+3-r}')
    e('v_cvt_pk_bf16_f32 v68, v72, v111')
    e(f'buffer_store_dwordx4 v[68:71], v10, s[32:35], s27 offen {OPT["osc"]}')
    stamp()
    flush_stamps()
    e('s_endpgm')
    lab('L_extra')
    e('s_waitcnt vmcnt(0)')
    e('v_mov_b32 v1, s36')
    e('s_mov_b64 exec, 1')
    e('buffer_store_dword v1, off, s[12:15], 0')
    lab('L_end')
    e('s_endpgm')
def hint(pos):
    if not OPT['hint'] or OPT['hpos'] != pos: return
    e('s_mov_b64 exec, s[62:63]')
    e('buffer_store_dword v101, v95, s[12:15], s61 offen sc1')
    e('s_mov_b64 exec, -1')
def gen():
    L.append(f'.globl {NAME}\n.p2align 8\n.type {NAME},@function\n{NAME}:')
    e('s_cmp_gt_u32 s2, 256')
    e('s_cbranch_scc1 L_end')
    stamp()
    e('s_load_dwordx2 s[8:9], s[0:1], 0')
    def ka2():
        e('s_load_dwordx2 s[12:13], s[0:1], 56')
        e('s_load_dwordx2 s[32:33], s[0:1], 40')
    if not OPT['ka']: ka2()
    if OPT['pf']:
        e('s_getpc_b64 s[40:41]')
        lab('L_pc')
        e(f'v_min_u32 v1, (L_end-L_pc)/64, v0')
        e('v_lshlrev_b32 v1, 6, v1')
        e('global_load_dword v115, v1, s[40:41]')
    if OPT['map'] < 2: e('s_and_b32 s17, s2, 7')
    if OPT['map'] == 0:
        e('s_sub_u32 s18, 16, s17')
        e('s_cmp_eq_u32 s17, 0')
        e('s_cselect_b32 s18, 8, s18')
        e('s_bitcmp1_b32 s2, 3')
        e('s_cselect_b32 s18, s18, s17')
    elif OPT['map'] == 1:
        e('s_bitcmp1_b32 s2, 3')
        e('s_addc_u32 s18, s17, s17')
    elif OPT['map'] == 2: e('s_and_b32 s18, s2, 15')
    if OPT['map'] < 3: e('s_lshr_b32 s17, s2, 4')
    elif OPT['map'] == 5:
        e('s_lshr_b32 s17, s2, 5')
        e('s_sub_u32 s18, 16, s17')
        e('s_cmp_eq_u32 s17, 0')
        e('s_cselect_b32 s18, 8, s18')
        e('s_bitcmp1_b32 s2, 2')
        e('s_cselect_b32 s18, s18, s17')
        e('s_and_b32 s17, s2, 3')
        e('s_bfe_u32 s20, s2, 0x20003')
        e('s_lshl2_add_u32 s17, s17, s20')
    elif OPT['map'] == 3:
        e('s_lshr_b32 s18, s2, 5')
        e('s_bitcmp1_b32 s2, 2')
        e('s_addc_u32 s18, s18, s18')
        e('s_and_b32 s17, s2, 3')
        e('s_bfe_u32 s20, s2, 0x20003')
        e('s_lshl2_add_u32 s17, s17, s20')
    else:
        e('s_lshr_b32 s18, s2, 4')
        e('s_and_b32 s17, s2, 7')
        e('s_bitcmp1_b32 s2, 3')
        e('s_addc_u32 s17, s17, s17')
    if not OPT['ld4']:
        e('v_lshrrev_b32 v3, 1, v0')
        e('v_lshl_add_u32 v6, v3, 4, s18')
        e('v_and_b32 v7, 1, v0')
        e('v_lshl_add_u32 v7, s17, 1, v7')
        e('v_lshlrev_b32 v8, 4, v7')
        e('v_lshl_add_u32 v73, v6, 10, v8')
        e('v_sub_u32 v6, 0x800, v6')
        e('v_and_b32 v6, 0x7ff, v6')
        e('v_sub_u32 v8, 1008, v8')
        e('v_lshl_add_u32 v74, v6, 10, v8')
        e('v_cmp_eq_u32 s[30:31], 0, v7')
        if OPT['una']: e('v_cmp_ne_u32 vcc, 31, v7')
        else: e('v_cmp_eq_u32 vcc, 0, v7')
        e('v_bfrev_b32 v11, 2')
        e('v_cndmask_b32 v75, v74, v11, vcc')
    else:
        e('v_lshrrev_b32 v3, 2, v0')
        e('v_lshl_add_u32 v6, v3, 4, s18')
        e('v_and_b32 v7, 3, v0')
        e('v_lshl_add_u32 v7, s17, 2, v7')
        e('v_lshlrev_b32 v8, 3, v7')
        e('v_lshl_add_u32 v92, v6, 10, v8')
        e('v_max_u32 v8, 4, v8')
        e('v_sub_u32 v6, 0x800, v6')
        e('v_and_b32 v6, 0x7ff, v6')
        e('v_sub_u32 v8, 1016, v8')
        e('v_lshl_add_u32 v93, v6, 10, v8')
        e('v_xor_b32 v94, 0x100000, v93')
        e('v_cmp_eq_u32 s[30:31], 0, v7')
        e('s_mov_b32 s19, 0x100000')
        if OPT['xpf']:
            e('s_bitcmp1_b32 s2, 4')
            e('s_cselect_b64 vcc, -1, 0')
            e('s_bitcmp1_b32 s2, 5')
            e('s_cselect_b32 s20, s19, 0')
            e('v_cndmask_b32 v91, v92, v93, vcc')
            e('v_xor_b32 v91, s20, v91')
    e(f's_mov_b32 s10, {0x200000 + 4*OPT["una"]}')
    e('s_mov_b32 s11, 0x20000')
    e('s_mov_b32 s14, 0x1000000')
    e('s_mov_b32 s15, s11')
    i0 = len(L); (lean_tables if OPT['r2'] else p1_tables)(); T1 = L[i0:]; del L[i0:]
    L.extend(T1[:OPT['t1pre']])
    e('s_waitcnt lgkmcnt(0)')
    if not OPT['ld4']:
        e(f'buffer_load_dwordx4 v[64:67], v73, s[8:11], 0 offen {OPT["xsc"]}')
        e(f'buffer_load_dwordx4 v[68:71], v74, s[8:11], 0 offen offset:{2 if OPT["una"] else 0} {OPT["xsc"]}')
        e(f'buffer_load_dword v72, v75, s[8:11], 0 offen offset:{0 if OPT["una"] else 16} {OPT["xsc"]}')
    else:
        if OPT['hint']: e('buffer_load_dword v15, off, s[12:15], 0')
        if OPT['xpf']: e('buffer_load_dword v114, v91, s[8:11], 0 offen')
        e('buffer_load_dwordx2 v[64:65], v92, s[8:11], 0 offen ' + OPT['xsc'])
        e('buffer_load_dwordx3 v[68:70], v93, s[8:11], 0 offen ' + OPT['xsc'])
        e('buffer_load_dwordx2 v[66:67], v92, s[8:11], s19 offen ' + OPT['xsc'])
        e('buffer_load_dwordx3 v[72:74], v94, s[8:11], 0 offen ' + OPT['xsc'])
    if OPT['ka']:
        ka2()
        L.extend(T1[OPT['t1pre']:OPT['t1pre']+30]); del T1[OPT['t1pre']:OPT['t1pre']+30]
        e('s_waitcnt lgkmcnt(0)')
    e('v_lshrrev_b32 v1, 6, v0')
    e('v_and_b32 v2, 63, v0')
    e('v_readfirstlane_b32 s16, v1')
    e('v_and_b32 v4, 15, v2')
    e('v_lshrrev_b32 v5, 4, v2')
    e('s_mov_b32 s37, 0x00010001')
    if not OPT['hint']: e('buffer_load_dword v15, off, s[12:15], 0')
    stamp()
    L.extend(T1[OPT['t1pre']:])
    e('v_lshlrev_b32 v8, 3, v2')
    if OPT['r2']:
        e('v_and_b32 v9, 64, v0')
        e('v_lshl_add_u32 v8, v9, 5, v8')
    e(f'v_lshlrev_b32 v9, {3 if OPT["ld4"] else 4}, v0')
    e('v_and_b32 v7, 0x63, v3')
    e('v_bfe_u32 v11, v3, 2, 2')
    e('v_lshl_add_u32 v7, v11, 3, v7')
    e('v_bfe_u32 v11, v3, 4, 1')
    e('v_lshl_add_u32 v7, v11, 2, v7')
    e(f'v_and_b32 v11, {3 if OPT["ld4"] else 1}, v0')
    e('v_lshl_add_u32 v7, v11, 7, v7')
    e('v_lshlrev_b32 v7, 1, v7')
    e('v_and_b32 v3, 3, v4')
    e('v_lshlrev_b32 v3, 6, v3')
    e('v_lshl_add_u32 v3, v5, 4, v3')
    e('v_xor_b32 v10, s18, v4')
    e('v_lshlrev_b32 v10, 7, v10')
    e('v_lshl_add_u32 v10, v6, 14, v10')
    e('v_lshl_add_u32 v10, v5, 4, v10')
    e('v_lshlrev_b32 v1, 7, v6')
    e('s_lshr_b32 s26, s17, 1')
    e('s_lshl_b32 s26, s26, 11')
    e('s_and_b32 s27, s17, 1')
    e('s_lshl_b32 s27, s27, 6')
    e('s_add_u32 s26, s26, s27')
    e(f's_add_u32 s26, s26, {ZOFF}')
    e('s_lshl_b32 s27, s18, 3')
    e(f's_add_u32 s27, s27, {ZOFF + (1<<20)}')
    e('s_and_b32 s44, s23, 0x80000000')
    e('s_or_b32 s44, s44, 1.0')
    e('s_and_b32 s45, s24, 0x80000000')
    e('s_or_b32 s45, s45, 1.0')
    e('s_bitcmp1_b32 s16, 0')
    e('s_cselect_b32 s42, 0, s45')
    e('s_cselect_b32 s43, s45, 0')
    e('s_mov_b32 s38, 0xffff0000')
    if OPT['hint']:
        e('s_lshr_b32 s61, s2, 4')
        e('s_lshl2_add_u32 s61, s61, s16')
        e('s_cmp_eq_u32 s61, 63')
        e('s_cselect_b64 s[62:63], 0xff, 0')
        e('s_and_b32 s61, s2, 15')
        e(f's_lshl_b32 s61, s61, {OPT["hs"]}')
        e(f's_add_u32 s61, s61, {HOFF}')
        e('v_lshlrev_b32 v95, 11, v2')
    e('v_lshlrev_b32 v11, 2, v5')
    if OPT['t2pre']: mapped(p2_setup)
    e('s_cmp_eq_u32 s2, 256')
    e('s_cbranch_scc1 L_p2x')
    stamp()
    if not OPT['ld4']:
        e('s_waitcnt vmcnt(3)')
        for i in range(4):
            e(f'v_lshlrev_b32 v{76+2*i}, 16, v{64+i}')
            e(f'v_and_b32 v{77+2*i}, s38, v{64+i}')
        e('s_waitcnt vmcnt(2)')
        if OPT['una']:
            for i in (0, 1, 2, 3):
                e(f'v_and_b32 v{84+2*i}, s38, v{68+3-i}')
                e(f'v_lshlrev_b32 v{85+2*i}, 16, v{68+3-i}')
            e('v_cndmask_b32 v84, v84, 0, s[30:31]')
        else: e(f'ds_write_b16 v7, v68 offset:{EL}')
        for i in (3, 2, 1, 0) if not OPT['una'] else ():
            e(f'v_and_b32 v{85+2*i}, s38, v{68+3-i}')
            if i == 0: e('s_waitcnt vmcnt(1)')
            e(f'v_lshlrev_b32 v{84+2*i}, 16, v{68+4-i}')
        for i in (3, 2, 1, 0):
            e(f'v_pk_add_f32 v[{76+2*i}:{77+2*i}], v[{76+2*i}:{77+2*i}], v[{84+2*i}:{85+2*i}]')
        for i in (3, 2, 1, 0):
            e(f'v_cvt_pk_bf16_f32 v{64+i}, v{76+2*i}, v{77+2*i}')
        e(f'ds_write_b128 v9, v[64:67] offset:{XL}')
        if OPT['una']:
            e('s_waitcnt vmcnt(1)')
            e(f'ds_write_b16 v7, v72 offset:{EL}')
    else:
        H = OPT['hint']
        if H:
            e(f's_waitcnt vmcnt({4+OPT["xpf"]})')
            e('v_add_u32 v101, 0x11111111, v15')
        hint(0)
        e('s_cmp_eq_u32 s17, 0')
        for p in range(2):
            a, b, A, B = 64+2*p, 68+4*p, 76+4*p, 84+4*p
            e(f's_waitcnt vmcnt({4-2*p-H+(H if OPT["hpos"] <= p else 0)})')
            if p == 0: hint(1)
            for i in range(2):
                e(f'v_lshlrev_b32 v{A+2*i}, 16, v{a+i}')
                e(f'v_and_b32 v{A+1+2*i}, s38, v{a+i}')
            e(f's_waitcnt vmcnt({3-2*p-H+(H if OPT["hpos"] <= 1 else 0)})')
            if p == 1: hint(2)
            e(f's_cbranch_scc0 L_nofix{p}')
            e(f'v_cndmask_b32 v{b}, v{b}, v{b+1}, s[30:31]')
            e(f'v_cndmask_b32 v{b+1}, v{b+1}, v{b+2}, s[30:31]')
            e(f'v_cndmask_b32 v{b+2}, v{b+2}, 0, s[30:31]')
            lab(f'L_nofix{p}')
            for i in range(2):
                e(f'v_lshlrev_b32 v{B+2*i}, 16, v{b+2-i}')
                e(f'v_and_b32 v{B+1+2*i}, s38, v{b+1-i}')
            for i in range(2):
                e(f'v_pk_add_f32 v[{A+2*i}:{A+1+2*i}], v[{A+2*i}:{A+1+2*i}], v[{B+2*i}:{B+1+2*i}]')
            e(f'ds_write_b16 v7, v{b} offset:{EL+128*p}')
            if OPT['r2']: continue
            for i in range(2):
                e(f'v_cvt_pk_bf16_f32 v{a+i}, v{A+2*i}, v{A+1+2*i}')
            e(f'ds_write_b64 v9, v[{a}:{a+1}] offset:{XL+2048*p}')
        for p in range(2 if OPT['r2'] else 0):
            ng = ' neg_lo:[0,1] neg_hi:[0,1]' if p else ''
            for i in range(2):
                e(f'v_pk_add_f32 v[{84+4*p+2*i}:{85+4*p+2*i}], v[{76+2*i}:{77+2*i}], v[{80+2*i}:{81+2*i}]{ng}')
        for p in range(2 if OPT['r2'] else 0):
            for i in range(2):
                e(f'v_cvt_pk_bf16_f32 v{64+2*p+i}, v{84+4*p+2*i}, v{85+4*p+2*i}')
        if OPT['r2']: e(f'ds_write2st64_b64 v9, v[64:65], v[66:67] offset0:{XL//512} offset1:{XL//512+4}')
    stamp()
    e('s_waitcnt lgkmcnt(0)')
    e('s_barrier')
    NK = 2 if OPT['r2'] else 4
    for kk in range(NK):
        for half in range(2):
            r = 64 + 4*kk + 2*half
            e(f'ds_read_b64_tr_b16 v[{r}:{r+1}], v8 offset:{XL + (32*kk+16*half)*32}')
    e(f'ds_read_b128 v[80:83], v3 offset:{EL+(768 if OPT["ld4"] else 256)}')
    if not OPT['hint']:
        e('s_waitcnt vmcnt(0)')
        e('v_add_u32 v101, 0x11111111, v15')
    e('v_lshrrev_b32 v12, v11, v101')
    for i in range(1, 4):
        e(f'v_lshrrev_b32 v{12+i}, {i}, v12')
    e('v_readfirstlane_b32 s36, v101')
    for kk in range(NK):
        e(f's_waitcnt lgkmcnt({2*NK - 1 - 2*kk})')
        for c in range(2):
            a = 48 + 4*c
            d = 64 + 4*kk
            t = 16 + 8*kk + 4*c
            cin = '0' if kk == 0 else f'v[{a}:{a+3}]'
            e(f'v_mfma_f32_16x16x32_bf16 v[{a}:{a+3}], v[{d}:{d+3}], v[{t}:{t+3}], {cin}')
    e('s_waitcnt lgkmcnt(0)')
    for c in range(2):
        e(f'v_mfma_f32_16x16x32_bf16 v[{56+4*c}:{59+4*c}], v[80:83], v[{16+4*c}:{19+4*c}], 0')
    e(f's_cmp_eq_u32 s17, {15 + 10*OPT["noe"]}')
    e('s_nop 2')
    for i in range(4):
        e(f'v_cvt_pk_bf16_f32 v{96+i}, v{48+2*i}, v{48+2*i+1}')
    for i in range(4):
        e(f'v_bfi_b32 v{96+i}, s37, v{12+i}, v{96+i}')
    e(f'buffer_store_dwordx4 v[96:99], v10, s[12:15], s26 offen {OPT["stsc"]}')
    stamp()
    e('s_cbranch_scc0 L_p2')
    e('v_fmac_f32 v56, s44, v58')
    e('v_fmac_f32 v57, s44, v59')
    e('v_fmac_f32 v60, s44, v62')
    e('v_fmac_f32 v61, s44, v63')
    e('v_fmac_f32 v56, s42, v57')
    e('v_fmac_f32 v60, s43, v57')
    e('v_fma_f32 v56, -s43, v61, v56')
    e('v_fmac_f32 v60, s42, v61')
    e('s_mov_b64 exec, 0xffff')
    e('v_cvt_pk_bf16_f32 v100, v56, v60')
    e(f'buffer_store_dwordx2 v[100:101], v1, s[12:15], s27 offen {OPT["stsc"]}')
    e('s_mov_b64 exec, -1')
    e('s_branch L_p2')
    lab('L_p2x')
    if OPT['epf']:
        e('v_lshlrev_b32 v95, 7, v0')
        e(f's_mov_b32 s61, {ZOFF + (1<<20)}')
        e('buffer_load_dword v114, v95, s[12:15], s61 offen')
    e('s_waitcnt vmcnt(0)')
    e('v_add_u32 v101, 0x11111111, v15')
    e('s_nop 0')
    e('v_readfirstlane_b32 s36, v101')
    lab('L_p2')
    mapped(p2)
def issue(buf):
    e(f's_mov_b32 m0, s{20 if buf == 0 else 22}')
    e('s_add_u32 s39, s39, 1')
    for i in range(4):
        e(f'buffer_load_dwordx4 v{1 if i & 1 else 3}, s[12:15], s19 offen offset:{1024*i} {OPT["zsc"]} lds')
    E = 56 if buf == 0 else 172
    for i in range(2):
        e(f'buffer_load_dwordx4 v[{E+4*i}:{E+3+4*i}], v92, s[12:15], s21 offen offset:{64*i} {OPT["zsc"]}')
def check(buf, pend):
    E = 56 if buf == 0 else 172
    for p in range(2):
        e(f's_waitcnt vmcnt({pend+4-2*p})')
        for hb in range(2):
            for half in range(2):
                r = 64 + 8*p + 4*hb + 2*half
                e(f'ds_read_b64_tr_b16 v[{r}:{r+1}], v6 offset:{buf*32768 + p*2048 + half*1024 + hb*512}')
    e(f's_waitcnt vmcnt({pend})')
    for i in range(4):
        if OPT['tail']: e(f'v_mov_b32 v{88+i}, v{E+2*i}')
        else: e(f'v_cndmask_b32 v{88+i}, 0, v{E+2*i}, s[46:47]')
    e(f'v_bitop3_b32 v93, v{E+1}, v{E+3}, s36 bitop3:0x7e')
    e(f'v_bitop3_b32 v94, v{E+5}, v{E+7}, s36 bitop3:0x7e')
    if OPT['tail']: e('v_mfma_f32_16x16x32_bf16 v[84:87], v[16:19], v[88:91], 0')
    else: e('v_mfma_f32_16x16x32_bf16 v[96:99], v[20:23], v[88:91], 0')
    for p in range(2):
        for hb in range(2):
            e(f's_waitcnt lgkmcnt({6 - 4*p - 2*hb})')
            a = 96 + 4*(2*p + hb)
            d = 64 + 8*p + 4*hb
            cin = '0' if (a != 96 or OPT['tail']) else f'v[{a}:{a+3}]'
            e(f'v_mfma_f32_16x16x32_bf16 v[{a}:{a+3}], v[16:19], v[{d}:{d+3}], {cin}')
            e(f'v_bitop3_b32 v114, v{d}, v{d+1}, v113 bitop3:0x7e')
            e(f'v_bitop3_b32 v115, v{d+2}, v{d+3}, v113 bitop3:0x7e')
            if p == 0 and hb == 0: e('v_or_b32 v112, v114, v115')
            else: e('v_or3_b32 v112, v112, v114, v115')
    e('v_and_b32 v112, s37, v112')
    if not OPT['noe']: e('v_or3_b32 v112, v112, v93, v94')
    e('v_cmp_ne_u32 vcc, 0, v112')
    e('s_cbranch_vccz L_go')
def p2():
    e('s_mov_b32 s34, 0x200000')
    e('s_mov_b32 s35, 0x20000')
    e('s_mov_b32 s39, 0')
    if not OPT['t2pre']: p2_setup()
    e('s_add_u32 s22, s20, 32768')
    if OPT['tail']: e('s_lshl_b32 s47, s16, 4')
    i0 = len(L)
    p2_setup_b()
    e('v_and_b32 v12, 12, v4')
    e('v_bfe_u32 v13, v4, 1, 1')
    e('v_add_u32 v12, v12, v13')
    e('v_and_b32 v13, 1, v4')
    e('v_lshl_add_u32 v12, v13, 4, v12')
    e('v_lshrrev_b32 v12, v12, s36')
    e('v_lshlrev_b32 v13, 14, v12')
    e('v_bfi_b32 v113, 1, v12, v13')
    T = L[i0:]; del L[i0:]
    k = len(T) - OPT['split']
    if OPT['hint']:
        e('s_and_b32 s61, s2, 7')
        e('s_lshl_b32 s61, s61, 11')
        e(f's_add_u32 s61, s61, {HOFF}')
        e(f'v_lshlrev_b32 v95, {OPT["hs"]}, v4')
        T.insert(k - OPT['hsplit'], '    buffer_load_dword v112, v95, s[12:15], s61 offen sc1'); k += 1
    L.extend(T[:k])
    stamp()
    if OPT['hint']:
        lab('L_hint')
        e('s_waitcnt vmcnt(0)')
        e('v_cmp_ne_u32 vcc, s36, v112')
        e('s_cbranch_vccz L_hok')
        e('buffer_load_dword v112, v95, s[12:15], s61 offen sc1')
        e('s_add_u32 s39, s39, 1')
        e('s_cmp_lt_u32 s39, 50000')
        e('s_cbranch_scc1 L_hint')
        lab('L_hok')
    if OPT['wst']: e('s_waitcnt vmcnt(0)')
    if OPT['wst'] > 1: e('s_barrier')
    if OPT['sleep']: e(f's_sleep {OPT["sleep"]}')
    stamp()
    if OPT['pipe']:
        issue(0)
        L.extend(T[k:])
        if OPT['rsleep']: e(f's_sleep {OPT["rsleep"]}')
        lab('L_round')
        issue(1)
        check(0, 6)
        issue(0)
        check(1, 6)
    else:
        issue(0)
        L.extend(T[k:])
        lab('L_round')
        check(0, 0)
        issue(0)
    e('s_cmp_lt_u32 s39, 100000')
    e('s_cbranch_scc1 L_round')
    lab('L_go')
    stamp()
    if OPT['cnt']:
        e('s_waitcnt lgkmcnt(0)')
        e('s_mul_i32 s39, s39, 100')
        e('s_add_u32 s66, s64, s39')
    (tail2 if OPT['tail'] else p2_tail)()
if __name__ == '__main__':
    parse(); gen(); finish(sys.argv[1], 180 if OPT['pipe'] else 172, 49152 if OPT['pipe'] else 29696)
```
